```python
import torch

def _softmax(x, axis=-1):
    return torch.softmax(x, dim=axis)
def _gelu(x):
    return torch.nn.functional.gelu(x, approximate="tanh")
def _silu(x):
    return torch.nn.functional.silu(x)
def _sigmoid(x):
    return torch.sigmoid(x)
def _layernorm(x, axis=-1, eps=1e-5):
    m = x.mean(dim=axis, keepdim=True)
    v = x.var(dim=axis, keepdim=True, unbiased=False)
    return (x - m) / torch.sqrt(v + eps)
def _scatter_add(tgt, idx, src, axis=0):
    return tgt.clone().index_add_(axis, idx, src)
def _segment_sum(src, seg, n):
    out = torch.zeros((n,) + src.shape[1:], dtype=src.dtype)
    return out.index_add_(0, seg, src)
def _pad(x, pw):
    flat = tuple(v for pair in reversed(pw) for v in pair)
    return torch.nn.functional.pad(x, flat)

kernel_name = 'standalone__sliding_block_cached__decode'

def setup_inputs():

    _w = (lambda a: (lambda t: t.to(torch.bfloat16) if t.is_floating_point() else t)(torch.as_tensor(a)))
    B, Sq, D = 4, 1, 576
    Hq, Hkv, Sk, Dh = 32, 16, 8192, 128
    assert Hq % Hkv == 0, (Hq, Hkv)
    return {
        "x": _w((lambda *s: torch.randn(*s, dtype=torch.bfloat16) * 0.8)(B, Sq, D)),
        "k_cache": _w((lambda *s: torch.randn(*s, dtype=torch.bfloat16) * 0.8)(B, Hkv, Sk, Dh)),
        "v_cache": _w((lambda *s: torch.randn(*s, dtype=torch.bfloat16) * 0.05)(B, Hkv, Sk, Dh)),
        "wq": _w((lambda *s: torch.randn(*s, dtype=torch.bfloat16) * 0.8)(D, Hq * Dh) * (D ** -0.5)),
        "wo": _w((lambda *s: torch.randn(*s, dtype=torch.bfloat16) * 0.05)(Hq * Dh, D) * ((Hq * Dh) ** -0.5)),
    }

def reference(x, k_cache, v_cache, wq, wo):
    B, Sq, D = x.shape
    Hq, Dh = 32, 128
    Hkv, Sk = k_cache.shape[1], k_cache.shape[2]
    W = min(4096, max(256, Sk // 4))
    rep = Hq // Hkv
    q = (lambda x, *d: x.permute(*d))((x @ wq).reshape(B, Sq, Hq, Dh), 0, 2, 1, 3)
    k = (lambda x, n, axis: torch.repeat_interleave(x, n, dim=axis))(k_cache[:, :, Sk - W:, :], rep, axis=1)
    v = (lambda x, n, axis: torch.repeat_interleave(x, n, dim=axis))(v_cache[:, :, Sk - W:, :], rep, axis=1)
    scores = torch.einsum("bhqd,bhkd->bhqk", q, k) * (Dh ** -0.5)
    p = _softmax(scores, axis=-1)
    o = torch.einsum("bhqk,bhkd->bhqd", p, v)
    return (lambda x, *d: x.permute(*d))(o, 0, 2, 1, 3).reshape(B, Sq, Hq * Dh) @ wo
```

```python
NAME = 'standalone__sliding_block_cached__decode_kernel'

HDR_COMMENT = """; Kernarg layout (64 bytes): x@0 k@8 v@16 wq@24 wo@32 out@40 debug@48 ws@56
"""

class Asm:
    def __init__(self):
        self.lines = []
    def __call__(self, s):
        for l in s.strip('\n').split('\n'):
            self.lines.append(l)
    def text(self):
        return '\n'.join(self.lines) + '\n'

def kernel_desc(name, vgpr, sgpr=102, accum=None, extra=''):
    if accum is None:
        accum = min(256, (vgpr + 3)//4*4)
    return f""".section .rodata,"a"
.p2align 6
.amdhsa_kernel {name}
  .amdhsa_next_free_vgpr {vgpr}
  .amdhsa_next_free_sgpr {sgpr}
  .amdhsa_accum_offset {accum}
  .amdhsa_group_segment_fixed_size 0
  .amdhsa_kernarg_size 64
  .amdhsa_user_sgpr_count 2
  .amdhsa_user_sgpr_kernarg_segment_ptr 1
  .amdhsa_system_sgpr_workgroup_id_x 1
{extra}.end_amdhsa_kernel
"""

def prologue(name, launch):
    return f"""{launch}
.amdgcn_target "amdgcn-amd-amdhsa--gfx950"
.text
.globl {name}
.p2align 8
.type {name},@function
{name}:
"""
```

```python
import sys, math
from asmlib import *

L_K    = 0
L_QP   = 131072
L_QF   = L_QP + 9*1024
L_FLAG = L_QF + 512
L_MX   = L_FLAG + 64
L_LACC = L_MX + 128
L_OACC = L_LACC + 64
L_OT   = L_OACC + 1088
L_END  = L_OT + 128
LDS_BYTES = (L_END + 255)//256*256
W_EPOCH = 0
W_X0 = 0x10000
W_X1 = 0x100000
W_X2 = 0x200000
W_SIZE = 0x400000
W_STAMP = 256 << 20
PHI = 0x9E3779B9
SCALE = (128 ** -0.5) * math.log2(math.e)
def f32hex(x):
    import struct
    return '0x%08x' % struct.unpack('<I', struct.pack('<f', x))[0]

sX, sK, sV, sWQ, sWO, sOUT, sWS = 4, 6, 8, 10, 12, 14, 16
sTAG = 18
rK, rV, rWQ, rWO, rWS, rX, rO = 20, 24, 28, 32, 36, 40, 44
sHKV, sB, sS, sROT = 48, 49, 50, 51
sT0, sT1, sT2, sT3 = 52, 53, 54, 55
sP0, sP1 = 56, 57
sCNT = 58
sSLAB = 59
sSRC = 60
sGRP = 61
sSC = 62
sST = 64
def srd(r): return f"s[{r}:{r+3}]"

vL = 0
vSEL = 8
vV = 16
vW = 48
vXD = 80
vACC = 84
vQF = 88
vKF = 104
vS = 120
def vr(a, n): return f"v[{a}:{a+n-1}]"

def gen(fname, stamps=False, kpre=9, dbg=False, spin_limit=20000, st_flags='sc1', ld_flags='sc1', stream='nt', wflag='nt'):
    a = Asm()
    hdr = open('standalone__sliding_block_cached__decode.s.ref').read().split('; Override launch')[0]
    a(hdr.rstrip('\n'))
    if stamps: a("; stamps=4096,8")
    a(prologue(NAME, f'; @launch grid=(256,1,1) block=(1024,1,1) lds={LDS_BYTES}'))
    nst = [0]
    def stamp(name):
        if stamps and name in stamps:
            i = stamps.index(name)
            a(f"  s_memrealtime s[{sST+2*i}:{sST+2*i+1}]")
    stamp('start')
    a(f"""
  s_cmp_ge_u32 s2, 256
  s_cbranch_scc1 L_end
  s_load_dwordx8 s[4:11], s[0:1], 0
  s_load_dwordx4 s[12:15], s[0:1], 32
  s_load_dwordx2 s[16:17], s[0:1], 56
  v_lshrrev_b32 v1, 6, v0
  v_and_b32 v0, 63, v0
  v_readfirstlane_b32 s3, v1
  s_and_b32 s{sT0}, s2, 7
  s_lshr_b32 s{sROT}, s2, 3
  s_and_b32 s{sT1}, s{sROT}, 1
  s_lshl_b32 s{sT1}, s{sT1}, 3
  s_add_u32 s{sHKV}, s{sT0}, s{sT1}
  s_lshr_b32 s{sT1}, s{sROT}, 1
  s_lshr_b32 s{sB}, s{sT1}, 2
  s_and_b32 s{sS}, s{sT1}, 3
  s_lshl_b32 s{sGRP}, s{sB}, 4
  s_add_u32 s{sGRP}, s{sGRP}, s{sHKV}       ; b*16+hkv
  s_lshl_b32 s{sSLAB}, s{sGRP}, 21
  s_lshl_b32 s{sT1}, s{sS}, 17
  s_add_u32 s{sSLAB}, s{sSLAB}, s{sT1}
  s_add_u32 s{sSLAB}, s{sSLAB}, 0x180000
  s_lshl_b32 s{sSRC}, s{sHKV}, 2
  s_add_u32 s{sSRC}, s{sSRC}, s{sS}         ; hkv*4+s
  s_lshl_b32 s{sP0}, s3, 1
  s_add_u32 s{sP0}, s{sP0}, s{sROT}
  s_add_u32 s{sP1}, s{sP0}, 1
  s_and_b32 s{sP0}, s{sP0}, 31
  s_and_b32 s{sP1}, s{sP1}, 31
  s_lshl_b32 s{sP0}, s{sP0}, 12
  s_lshl_b32 s{sP1}, s{sP1}, 12
  v_lshrrev_b32 v1, 3, v0                   ; cls = l>>3
  v_and_b32 v2, 7, v0                       ; c8
  s_cmp_ge_u32 s3, 9
  s_cbranch_scc1 L_noq
""")
    a(f"""
  v_mul_u32_u24 v3, {72*8192}, v1
  v_lshl_add_u32 v3, v2, 4, v3
  v_mul_u32_u24 v4, 144, v1                 ; x voffset
  s_lshl_b32 s{sT0}, s{sHKV}, 9
  s_lshl_b32 s{sT1}, s{sS}, 7
  s_add_u32 s{sT0}, s{sT0}, s{sT1}
  s_mul_i32 s{sT1}, s{sB}, 1152
  s_lshl_b32 s{sT2}, s3, 4
  s_add_u32 s{sT1}, s{sT1}, s{sT2}          ; x soffset = b*1152 + w*16
  s_lshl_b32 s{sT2}, s3, 16                 ; w*8 rows * 8192
  s_waitcnt lgkmcnt(0)
  s_mov_b32 s{rX}, s{sX}
  s_and_b32 s{rX+1}, s{sX+1}, 0xffff
  s_mov_b32 s{rX+2}, 4608
  s_mov_b32 s{rX+3}, 0x20000
  s_add_u32 s{rWQ}, s{sWQ}, s{sT0}
  s_addc_u32 s{rWQ+1}, s{sWQ+1}, 0
  s_and_b32 s{rWQ+1}, s{rWQ+1}, 0xffff
  s_sub_u32 s{rWQ+2}, {576*8192}, s{sT0}
  s_mov_b32 s{rWQ+3}, 0x20000
  buffer_load_dwordx4 {vr(vXD,4)}, v4, {srd(rX)}, s{sT1} offen
""")
    for g in range(8):
        a(f"  buffer_load_dwordx4 {vr(vW+4*g,4)}, v3, {srd(rWQ)}, s{sT2} offen {wflag}")
        if g < 7: a(f"  s_add_u32 s{sT2}, s{sT2}, 8192")
    a("  s_branch L_common")
    a("L_noq:")
    a("  s_waitcnt lgkmcnt(0)")
    def build_kv_srd():
        a(f"""  s_add_u32 s{rK}, s{sK}, s{sSLAB}
  s_addc_u32 s{rK+1}, s{sK+1}, 0
  s_and_b32 s{rK+1}, s{rK+1}, 0xffff
  s_mov_b32 s{rK+2}, 0x20000
  s_mov_b32 s{rK+3}, 0x20000""")
    def k_dma():
        a(f"""  v_lshrrev_b32 v4, 4, v{vL}                ; kgl
  v_and_b32 v5, 15, v{vL}
  v_lshlrev_b32 v6, 2, v4
  v_xor_b32 v5, v5, v6                      ; (l&15) ^ 4kgl
  v_lshlrev_b32 v5, 4, v5
  v_lshl_add_u32 v4, v4, 8, v5              ; voff_0
  v_xor_b32 v5, 16, v4
  v_xor_b32 v6, 32, v4
  v_xor_b32 v7, 48, v4
  s_lshl_b32 s{sT0}, s3, 13
  s_mov_b32 m0, s{sT0}
  s_add_u32 s{sT0}, s{sT0}, 4096""")
        for t in range(2):
            if t == 1:
                a(f"  s_mov_b32 m0, s{sT0}")
                a("  s_nop 0")
            for i in range(4):
                a(f"  buffer_load_dwordx4 v{4+i}, {srd(rK)}, s{sP0+t} offen offset:{i*1024} {stream} lds")
    build_kv_srd()
    a(f"  s_cmp_lt_u32 s3, {kpre}")
    a(f"  s_cbranch_scc1 L_nopre")
    k_dma()
    a("L_nopre:")
    a(f"""  s_cmp_lg_u32 s3, 9
  s_cbranch_scc1 L_common2
  v_mov_b32 v{vXD}, 0
  v_mov_b32 v{vXD+1}, 0
  v_mov_b32 v{vXD+2}, 0
  v_mov_b32 v{vXD+3}, 0
  v_lshlrev_b32 v4, 4, v{vL}
  v_add_u32 v4, {L_FLAG}, v4
  ds_write_b128 v4, {vr(vXD,4)}
  v_add_u32 v4, 1024, v4
  v_cmp_gt_u32 vcc, {L_OT}, v4
  s_and_saveexec_b64 s[{sT0}:{sT0+1}], vcc
  ds_write_b128 v4, {vr(vXD,4)}
  s_mov_b64 exec, s[{sT0}:{sT0+1}]
  s_branch L_common2
""")
    assert (L_OT - L_FLAG) <= 2048 and (L_OT - L_FLAG) % 16 == 0
    a("L_common:")
    build_kv_srd()
    a("L_common2:")
    a(f"""  s_lshl_b32 s{sT0}, s{sB}, 8
  s_load_dword s{sTAG}, s[{sWS}:{sWS+1}], s{sT0}
  s_add_u32 s{rV}, s{sV}, s{sSLAB}
  s_addc_u32 s{rV+1}, s{sV+1}, 0
  s_and_b32 s{rV+1}, s{rV+1}, 0xffff
  s_mov_b32 s{rV+2}, 0x20000
  s_mov_b32 s{rV+3}, 0x20000
  s_mov_b32 s{rWS}, s{sWS}
  s_and_b32 s{rWS+1}, s{sWS+1}, 0xffff
  s_mov_b32 s{rWS+2}, {W_SIZE}
  s_mov_b32 s{rWS+3}, 0x20000
  s_mul_i32 s{sT0}, s{sSRC}, {64*1152}
  s_add_u32 s{rWO}, s{sWO}, s{sT0}
  s_addc_u32 s{rWO+1}, s{sWO+1}, 0
  s_and_b32 s{rWO+1}, s{rWO+1}, 0xffff
  s_mov_b32 s{rWO+2}, {64*1152}
  s_mov_b32 s{rWO+3}, 0x20000
  s_mov_b32 s{rO}, s{sOUT}
  s_and_b32 s{rO+1}, s{sOUT+1}, 0xffff
  s_mov_b32 s{rO+2}, 4608
  s_mov_b32 s{rO+3}, 0x20000
  s_mov_b32 s{sSC}, {f32hex(SCALE)}
  v_and_b32 v4, 1, v{vL}
  v_cmp_eq_u32 vcc, 1, v4
  v_mov_b32 v5, 0x0c0c0100
  v_mov_b32 v6, 0x01000c0c
  v_cndmask_b32 v5, v5, v6, vcc             ; e=0 pattern
  v_mov_b32 v6, 0x0c0c0302
  v_mov_b32 v7, 0x03020c0c
  v_cndmask_b32 v6, v6, v7, vcc             ; e=1 pattern
  v_bfe_u32 v4, v{vL}, 1, 2                 ; (l&7)>>1
  v_mov_b32 v7, 0x0c0c0c0c
""")
    for i in range(4):
        a(f"""  v_cmp_eq_u32 vcc, {i}, v4
  s_nop 1
  v_cndmask_b32 v{vSEL+2*i}, v7, v5, vcc
  v_cndmask_b32 v{vSEL+2*i+1}, v7, v6, vcc""")
    def diag_mfma(src_pairs, data, acc, waits, tmpA=(vQF, vQF+4)):
        for g in range(8):
            A = tmpA[g & 1]
            for i in range(4):
                a(f"  v_perm_b32 v{A+i}, v{src_pairs+(g>>1)}, v{src_pairs+(g>>1)}, v{vSEL+2*i+(g&1)}")
            w = waits(g)
            a(f"  {w}" if w else "  s_nop 0")
            a("  s_nop 0")
            a(f"  v_mfma_f32_16x16x32_bf16 {vr(acc,4)}, {vr(A,4)}, {vr(data(g),4)}, {vr(acc,4)}")
    a(f"""  s_cmp_ge_u32 s3, 9
  s_cbranch_scc1 L_bb
  v_mov_b32 v{vACC}, 0
  v_mov_b32 v{vACC+1}, 0
  v_mov_b32 v{vACC+2}, 0
  v_mov_b32 v{vACC+3}, 0
  s_waitcnt vmcnt(8)
""")
    diag_mfma(vXD, lambda g: vW+4*g, vACC, lambda g: f"s_waitcnt vmcnt({7-g})")
    a(f"""  v_lshlrev_b32 v4, 4, v{vL}
  s_lshl_b32 s{sT0}, s3, 10
  s_add_u32 s{sT0}, s{sT0}, {L_QP}
  v_add_u32 v4, s{sT0}, v4
  s_nop 7
  ds_write_b128 v4, {vr(vACC,4)}
L_bb:
  s_waitcnt lgkmcnt(0)
  s_add_u32 s{sTAG}, s{sTAG}, {PHI}
  s_barrier
""")
    stamp('bb')
    a(f"""  s_cmp_lg_u32 s3, 15
  s_cbranch_scc1 L_noex
  s_setprio 3
  v_lshrrev_b32 v4, 3, v{vL}
  v_bfe_u32 v5, v{vL}, 2, 1
  v_lshl_add_u32 v4, v5, 4, v4              ; lane' = (l>>3) + 16*((l>>2)&1)
  v_lshlrev_b32 v4, 4, v4
  v_and_b32 v5, 3, v{vL}
  v_lshl_add_u32 v4, v5, 2, v4
  v_add_u32 v4, {L_QP}, v4
""")
    for w in range(9):
        a(f"  ds_read_b32 v{vQF+2*w}, v4 offset:{w*1024}")
        a(f"  ds_read_b32 v{vQF+2*w+1}, v4 offset:{w*1024+640}")
        if w == 6: a("  s_waitcnt lgkmcnt(0)")
    a("  s_waitcnt lgkmcnt(0)")
    for k in (9, 4, 2):
        pass
    regs = [vQF+i for i in range(18)]
    while len(regs) > 1:
        nxt = []
        for i in range(0, len(regs)-1, 2):
            a(f"  v_add_f32 v{regs[i]}, v{regs[i]}, v{regs[i+1]}")
            nxt.append(regs[i])
        if len(regs) & 1: nxt.append(regs[-1])
        regs = nxt
    q = regs[0]
    a(f"""  s_nop 1
  v_mov_b32_dpp v5, v{q} quad_perm:[0,0,2,2] row_mask:0xf bank_mask:0xf
  v_mov_b32_dpp v6, v{q} quad_perm:[1,1,3,3] row_mask:0xf bank_mask:0xf
  v_cvt_pk_bf16_f32 v6, v5, v6
  v_mov_b32 v7, s{sTAG}
  v_lshrrev_b32 v4, 1, v{vL}
  v_lshlrev_b32 v4, 3, v4                   ; (l>>1)*8
  s_lshl_b32 s{sT0}, s{sGRP}, 10
  s_add_u32 s{sT0}, s{sT0}, {W_X0}
  s_lshl_b32 s{sT1}, s{sS}, 8
  s_add_u32 s{sT1}, s{sT1}, s{sT0}
  s_mov_b32 exec_lo, 0x55555555
  s_mov_b32 exec_hi, 0x55555555
  buffer_store_dwordx2 v[6:7], v4, {srd(rWS)}, s{sT1} offen {st_flags}
  s_mov_b64 exec, -1
  v_lshlrev_b32 v4, 4, v{vL}
  s_mov_b32 s{sCNT}, 0
L_poll0:
  buffer_load_dwordx4 {vr(vQF,4)}, v4, {srd(rWS)}, s{sT0} offen {ld_flags}
  s_add_u32 s{sCNT}, s{sCNT}, 1
  s_waitcnt vmcnt(0)
  v_cmp_ne_u32 vcc, s{sTAG}, v{vQF+1}
  v_cmp_ne_u32 s[{sT2}:{sT2+1}], s{sTAG}, v{vQF+3}
  s_nop 1
  s_or_b64 vcc, vcc, s[{sT2}:{sT2+1}]
  s_cbranch_vccz L_got0
  s_cmp_lt_u32 s{sCNT}, {spin_limit}
  s_cbranch_scc1 L_poll0
L_got0:
  v_mov_b32 v{vQF+1}, v{vQF+2}
  v_lshlrev_b32 v4, 3, v{vL}
  v_add_u32 v4, {L_QF}, v4
  ds_write_b64 v4, {vr(vQF,2)}
  v_mov_b32 v5, 1
  v_mov_b32 v4, {L_FLAG}
  s_waitcnt lgkmcnt(0)
  ds_write_b32 v4, v5
  s_setprio 0
L_noex:
""")
    a(f"  s_cmp_ge_u32 s3, {kpre}")
    if kpre > 9:
        raise NotImplementedError
    a(f"  s_cbranch_scc1 L_kdone")
    k_dma()
    a("L_kdone:")
    a(f"  v_lshlrev_b32 v4, 4, v{vL}")
    for t in range(2):
        for r in range(4):
            a(f"  buffer_load_dwordx4 {vr(vV+16*t+4*r,4)}, v4, {srd(rV)}, s{sP0+t} offen offset:{r*1024} {stream}")
    a(f"""  v_mov_b32 v4, {L_FLAG}
  s_mov_b32 s{sCNT}, 0
L_spin:
  ds_read_b32 v5, v4
  s_add_u32 s{sCNT}, s{sCNT}, 1
  s_waitcnt lgkmcnt(0)
  v_readfirstlane_b32 s{sT0}, v5
  s_cmp_eq_u32 s{sT0}, 1
  s_cbranch_scc1 L_gotq
  s_sleep 4
  s_cmp_lt_u32 s{sCNT}, {spin_limit*4}
  s_cbranch_scc1 L_spin
L_gotq:
""")
    stamp('gotq')
    a(f"""  v_bfe_u32 v4, v{vL}, 3, 1                 ; h
  v_lshrrev_b32 v5, 4, v{vL}                ; kg
  v_lshlrev_b32 v4, 8, v4
  v_lshl_add_u32 v4, v5, 4, v4
  v_add_u32 v4, {L_QF}, v4
""")
    for st in range(4):
        a(f"  ds_read_b128 {vr(vQF+4*st,4)}, v4 offset:{st*64}")
    a(f"""  v_and_b32 v6, 15, v{vL}                   ; m
  v_xor_b32 v5, v5, v6                      ; kg ^ m
  v_lshlrev_b32 v5, 4, v5
  v_and_b32 v7, 3, v6
  v_lshlrev_b32 v7, 2, v7
  v_lshrrev_b32 v6, 2, v6
  v_add_u32 v6, v6, v7                      ; rho
  v_lshl_add_u32 v4, v6, 8, v5
  s_lshl_b32 s{sT0}, s3, 13
  v_add_u32 v4, s{sT0}, v4
  v_xor_b32 v5, 64, v4
  v_xor_b32 v6, 128, v4
  v_xor_b32 v7, 192, v4
""")
    for i in range(8): a(f"  v_mov_b32 v{vS+i}, 0")
    a("  s_waitcnt vmcnt(8)")
    for t in range(2):
        for st in range(4):
            a(f"  ds_read_b128 {vr(vKF+4*st,4)}, v{4+st} offset:{t*4096}")
        for st in range(4):
            a(f"  s_waitcnt lgkmcnt({3-st})")
            a(f"  v_mfma_f32_16x16x32_bf16 {vr(vS+4*t,4)}, {vr(vKF+4*st,4)}, {vr(vQF+4*st,4)}, {vr(vS+4*t,4)}")
    vM, vLs, vP = vQF, vQF+1, vQF+2
    vT = vQF+6
    a(f"""  s_nop 7
  v_max3_f32 v{vM}, v{vS}, v{vS+1}, v{vS+2}
  v_max3_f32 v{vT}, v{vS+3}, v{vS+4}, v{vS+5}
  v_max3_f32 v{vM}, v{vM}, v{vS+6}, v{vS+7}
  v_max_f32 v{vM}, v{vM}, v{vT}
  v_mov_b32 v{vT}, v{vM}
  s_nop 1
  v_permlane16_swap_b32 v{vM}, v{vT}
  s_nop 1
  v_max_f32 v{vM}, v{vM}, v{vT}
  v_mov_b32 v{vT}, v{vM}
  s_nop 1
  v_permlane32_swap_b32 v{vM}, v{vT}
  s_nop 1
  v_max_f32 v{vM}, v{vM}, v{vT}
  v_mul_f32 v{vM}, s{sSC}, v{vM}
""")
    for i in range(8):
        a(f"  v_fma_f32 v{vS+i}, v{vS+i}, s{sSC}, -v{vM}")
    for i in range(8):
        a(f"  v_exp_f32 v{vS+i}, v{vS+i}")
    a("  s_nop 0")
    a(f"""  v_add_f32 v{vLs}, v{vS}, v{vS+1}
  v_add_f32 v{vT}, v{vS+2}, v{vS+3}
  v_add_f32 v{vT+1}, v{vS+4}, v{vS+5}
  v_add_f32 v{vT+2}, v{vS+6}, v{vS+7}
  v_add_f32 v{vLs}, v{vLs}, v{vT}
  v_add_f32 v{vT+1}, v{vT+1}, v{vT+2}
  v_add_f32 v{vLs}, v{vLs}, v{vT+1}
  v_cvt_pk_bf16_f32 v{vP}, v{vS}, v{vS+1}
  v_cvt_pk_bf16_f32 v{vP+1}, v{vS+2}, v{vS+3}
  v_cvt_pk_bf16_f32 v{vP+2}, v{vS+4}, v{vS+5}
  v_cvt_pk_bf16_f32 v{vP+3}, v{vS+6}, v{vS+7}
  v_mov_b32 v{vT}, v{vLs}
  s_nop 1
  v_permlane16_swap_b32 v{vLs}, v{vT}
  s_nop 1
  v_add_f32 v{vLs}, v{vLs}, v{vT}
  v_mov_b32 v{vT}, v{vLs}
  s_nop 1
  v_permlane32_swap_b32 v{vLs}, v{vT}
  s_nop 1
  v_add_f32 v{vLs}, v{vLs}, v{vT}
  v_bfe_u32 v4, v{vL}, 3, 1
  v_lshlrev_b32 v4, 2, v4
  s_lshl_b32 s{sT0}, s3, 3
  s_add_u32 s{sT0}, s{sT0}, {L_MX}
  v_add_u32 v4, s{sT0}, v4
  s_mov_b32 exec_lo, 0x101
  s_mov_b32 exec_hi, 0
  ds_write_b32 v4, v{vM}
  s_mov_b64 exec, -1
  s_waitcnt lgkmcnt(0)
  s_barrier
""")
    stamp('bmax')
    a(f"""  s_cmp_lt_u32 s3, 7
  s_cbranch_scc1 L_nowo
  v_lshrrev_b32 v4, 3, v{vL}
  v_mul_u32_u24 v4, 9216, v4
  v_and_b32 v5, 7, v{vL}
  v_lshl_add_u32 v4, v5, 4, v4
  s_sub_u32 s{sT0}, s3, 7
  s_lshl_b32 s{sT0}, s{sT0}, 7
  s_add_u32 s{sT1}, s{sT0}, 4608
""")
    for g in range(8):
        a(f"  buffer_load_dwordx4 {vr(vW+4*g,4)}, v4, {srd(rWO)}, s{sT0 if g < 4 else sT1} offen offset:{(g&3)*1152} {wflag}")
    a("L_nowo:")
    stamp('woissued')
    vF, vMG = vQF+6, vQF+7
    a(f"""  v_and_b32 v4, 15, v{vL}
  v_lshlrev_b32 v4, 3, v4
  v_lshrrev_b32 v5, 5, v{vL}                ; h' = l>>5
  v_lshl_add_u32 v4, v5, 2, v4
  v_add_u32 v4, {L_MX}, v4
  ds_read_b32 v{vMG}, v4
  s_lshl_b32 s{sT0}, s3, 3
  s_add_u32 s{sT0}, s{sT0}, {L_MX}
  v_lshlrev_b32 v5, 2, v5
  v_add_u32 v5, s{sT0}, v5
  ds_read_b32 v{vF}, v5                     ; own m_w[h']
  v_mov_b32 v{vACC}, 0
  v_mov_b32 v{vACC+1}, 0
  v_mov_b32 v{vACC+2}, 0
  v_mov_b32 v{vACC+3}, 0
  s_waitcnt lgkmcnt(0)
  v_max_f32_dpp v{vMG}, v{vMG}, v{vMG} row_ror:8 row_mask:0xf bank_mask:0xf
  s_nop 1
  v_max_f32_dpp v{vMG}, v{vMG}, v{vMG} row_ror:4 row_mask:0xf bank_mask:0xf
  s_nop 1
  v_max_f32_dpp v{vMG}, v{vMG}, v{vMG} row_ror:2 row_mask:0xf bank_mask:0xf
  s_nop 1
  v_max_f32_dpp v{vMG}, v{vMG}, v{vMG} row_ror:1 row_mask:0xf bank_mask:0xf
  s_nop 0
  v_sub_f32 v{vF}, v{vF}, v{vMG}
  v_exp_f32 v{vF}, v{vF}
  s_cmp_lt_u32 s3, 7
  s_cbranch_scc1 L_pv0
""")
    tA = (vQF+8, vQF+12)
    diag_mfma(vP, lambda g: vV+4*g, vACC, lambda g: f"s_waitcnt vmcnt({15-g})", tA)
    a("  s_branch L_pvd")
    a("L_pv0:")
    diag_mfma(vP, lambda g: vV+4*g, vACC, lambda g: f"s_waitcnt vmcnt({7-g})", tA)
    a("L_pvd:")
    stamp('pvdone')
    a(f"""  v_mul_f32 v{vLs}, v{vLs}, v{vF}
  v_lshlrev_b32 v4, 2, v{vL}
  v_add_u32 v4, {L_OACC}, v4
  v_lshrrev_b32 v5, 5, v{vL}
  v_lshlrev_b32 v5, 2, v5
  v_add_u32 v5, {L_LACC}, v5
  s_nop 4
  v_mul_f32 v{vACC}, v{vACC}, v{vF}
  v_mul_f32 v{vACC+1}, v{vACC+1}, v{vF}
  v_mul_f32 v{vACC+2}, v{vACC+2}, v{vF}
  v_mul_f32 v{vACC+3}, v{vACC+3}, v{vF}
  ds_add_f32 v4, v{vACC}
  ds_add_f32 v4, v{vACC+1} offset:272
  ds_add_f32 v4, v{vACC+2} offset:544
  ds_add_f32 v4, v{vACC+3} offset:816
  s_mov_b32 exec_lo, 1
  s_mov_b32 exec_hi, 0x100
  ds_add_f32 v5, v{vLs}
  s_mov_b64 exec, -1
  s_waitcnt lgkmcnt(0)
""")
    stamp('added')
    a("  s_barrier")
    stamp('bd')
    a(f"""  s_cmp_ge_u32 s3, 4
  s_cbranch_scc1 L_nopub1
  v_and_b32 v4, 3, v{vL}
  v_mul_u32_u24 v4, 68, v4
  v_bfe_u32 v5, v{vL}, 2, 1
  v_lshl_add_u32 v4, v5, 4, v4
  v_lshrrev_b32 v5, 3, v{vL}
  v_add_u32 v4, v4, v5
  s_lshr_b32 s{sT0}, s3, 1                   ; h
  s_and_b32 s{sT1}, s3, 1
  s_lshl_b32 s{sT2}, s{sT0}, 5
  s_lshl_b32 s{sT1}, s{sT1}, 3
  s_add_u32 s{sT1}, s{sT1}, s{sT2}           ; 32h + 8(s'&1)
  v_add_u32 v4, s{sT1}, v4
  v_lshlrev_b32 v4, 2, v4
  v_add_u32 v4, {L_OACC}, v4
  ds_read_b32 v{vKF}, v4
  s_lshl_b32 s{sT1}, s{sT0}, 2
  s_add_u32 s{sT1}, s{sT1}, {L_LACC}
  v_mov_b32 v5, s{sT1}
  ds_read_b32 v6, v5
  v_readlane_b32 s{sT1}, v{vMG}, s{sT2}
  v_and_b32 v5, 1, v{vL}
  v_cmp_eq_u32 vcc, 1, v5
  v_mov_b32 v7, s{sT1}
  v_mov_b32 v{vKF+1}, s{sTAG}
  v_mov_b32 v{vKF+3}, s{sTAG}
  s_lshl_b32 s{sT0}, s{sGRP}, 14
  s_add_u32 s{sT0}, s{sT0}, {W_X1}
  s_lshl_b32 s{sT1}, s3, 12                  ; dst*4*1024
  s_add_u32 s{sT0}, s{sT0}, s{sT1}
  s_lshl_b32 s{sT1}, s{sS}, 10               ; src*1024
  s_add_u32 s{sT0}, s{sT0}, s{sT1}
  v_lshlrev_b32 v4, 4, v{vL}
  s_waitcnt lgkmcnt(0)
  v_cndmask_b32 v{vKF+2}, v7, v6, vcc
  buffer_store_dwordx4 {vr(vKF,4)}, v4, {srd(rWS)}, s{sT0} offen {st_flags}
L_nopub1:
  s_cmp_lg_u32 s3, 4
  s_cbranch_scc1 L_nocons1
  s_lshl_b32 s{sT0}, s{sGRP}, 14
  s_add_u32 s{sT0}, s{sT0}, {W_X1}
  s_lshl_b32 s{sT1}, s{sS}, 12
  s_add_u32 s{sT0}, s{sT0}, s{sT1}
  v_lshlrev_b32 v4, 4, v{vL}
  s_mov_b32 s{sCNT}, 0
L_poll1:
""")
    G = vKF
    for src in range(4):
        a(f"  buffer_load_dwordx4 {vr(G+4*src,4)}, v4, {srd(rWS)}, s{sT0} offen offset:{src*1024} {ld_flags}")
    a(f"  s_add_u32 s{sCNT}, s{sCNT}, 1")
    a("  s_waitcnt vmcnt(0)")
    a(f"  v_cmp_ne_u32 vcc, s{sTAG}, v{G+1}")
    for k in range(1, 8):
        reg = G + 4*(k>>1) + (1 if (k & 1) == 0 else 3)
        a(f"  v_cmp_ne_u32 s[{sT2}:{sT2+1}], s{sTAG}, v{reg}")
        a("  s_nop 1")
        a(f"  s_or_b64 vcc, vcc, s[{sT2}:{sT2+1}]")
    a(f"""  s_cbranch_vccz L_got1
  s_cmp_lt_u32 s{sCNT}, {spin_limit}
  s_cbranch_scc1 L_poll1
L_got1:
""")
    for src in range(4):
        a(f"  v_mov_b32_dpp v{G+4*src+1}, v{G+4*src+2} quad_perm:[0,0,2,2] row_mask:0xf bank_mask:0xf")
        a(f"  v_mov_b32_dpp v{G+4*src+3}, v{G+4*src+2} quad_perm:[1,1,3,3] row_mask:0xf bank_mask:0xf")
    a(f"""  v_max3_f32 v5, v{G+1}, v{G+5}, v{G+9}
  v_max_f32 v5, v5, v{G+13}
""")
    for src in range(4):
        a(f"  v_sub_f32 v{G+4*src+1}, v{G+4*src+1}, v5")
    for src in range(4):
        a(f"  v_exp_f32 v{G+4*src+1}, v{G+4*src+1}")
    a(f"""  s_nop 0
  v_mul_f32 v6, v{G+1}, v{G+3}
  v_mul_f32 v7, v{G+1}, v{G}
  v_fmac_f32 v6, v{G+5}, v{G+7}
  v_fmac_f32 v7, v{G+5}, v{G+4}
  v_fmac_f32 v6, v{G+9}, v{G+11}
  v_fmac_f32 v7, v{G+9}, v{G+8}
  v_fmac_f32 v6, v{G+13}, v{G+15}
  v_fmac_f32 v7, v{G+13}, v{G+12}
  v_rcp_f32 v6, v6
  s_nop 0
  v_mul_f32 v7, v7, v6
  v_cvt_pk_bf16_f32 v7, v7, v7
  v_lshlrev_b32 v4, 1, v{vL}
  v_add_u32 v4, {L_OT}, v4
  ds_write_b16 v4, v7
L_nocons1:
  s_waitcnt lgkmcnt(0)
  s_barrier
""")
    stamp('be')
    a(f"""  s_cmp_lt_u32 s3, 7
  s_cbranch_scc1 L_noy
  v_lshrrev_b32 v4, 3, v{vL}
  v_lshlrev_b32 v4, 4, v4
  v_add_u32 v4, {L_OT}, v4
  ds_read_b128 {vr(vXD,4)}, v4
  v_mov_b32 v{vACC}, 0
  v_mov_b32 v{vACC+1}, 0
  v_mov_b32 v{vACC+2}, 0
  v_mov_b32 v{vACC+3}, 0
  s_waitcnt vmcnt(0) lgkmcnt(0)
""")
    diag_mfma(vXD, lambda g: vW+4*g, vACC, lambda g: None, (vQF, vQF+4))
    Y = vKF
    a(f"""  v_and_b32 v4, 7, v{vL}
  v_lshlrev_b32 v4, 12, v4
  v_bfe_u32 v5, v{vL}, 4, 1
  v_lshl_add_u32 v4, v5, 5, v4               ; c*4096 + jh*32
  s_mul_i32 s{sT0}, s{sB}, {72*4096}
  s_add_u32 s{sT0}, s{sT0}, {W_X2}
  s_sub_u32 s{sT1}, s3, 7
  s_lshl_b32 s{sT1}, s{sT1}, 15
  s_add_u32 s{sT0}, s{sT0}, s{sT1}
  s_lshl_b32 s{sT1}, s{sSRC}, 6
  s_add_u32 s{sT0}, s{sT0}, s{sT1}
  v_mov_b32 v{Y+1}, s{sTAG}
  v_mov_b32 v{Y+3}, s{sTAG}
  v_mov_b32 v{Y+5}, s{sTAG}
  v_mov_b32 v{Y+7}, s{sTAG}
  s_nop 1
""")
    for r in range(4):
        a(f"  v_permlane32_swap_b32 v{vACC+r}, v{vQF+8+r}")
    a("  s_nop 1")
    for r in range(4):
        a(f"  v_add_f32_dpp v{Y+2*r}, v{vQF+8+r}, v{vACC+r} row_ror:8 row_mask:0xf bank_mask:0xf")
    a(f"""  s_mov_b32 exec_lo, 0x00ff00ff
  s_mov_b32 exec_hi, 0
  buffer_store_dwordx4 {vr(Y,4)}, v4, {srd(rWS)}, s{sT0} offen {st_flags}
  buffer_store_dwordx4 {vr(Y+4,4)}, v4, {srd(rWS)}, s{sT0} offen offset:16 {st_flags}
  s_mov_b64 exec, -1
  s_branch L_fin
L_noy:
  s_cmp_ge_u32 s3, 2
  s_cbranch_scc1 L_fin
  s_mov_b32 s{sT1}, s{sSRC}
  s_cmp_eq_u32 s3, 0
  s_cbranch_scc1 L_c2
  s_cmp_ge_u32 s{sSRC}, 8
  s_cbranch_scc1 L_fin
  s_add_u32 s{sT1}, s{sSRC}, 64
L_c2:
  s_mul_i32 s{sT0}, s{sB}, {72*4096}
  s_add_u32 s{sT0}, s{sT0}, {W_X2}
  s_lshl_b32 s{sT2}, s{sT1}, 12
  s_add_u32 s{sT0}, s{sT0}, s{sT2}
  v_lshlrev_b32 v4, 4, v{vL}
  s_mov_b32 s{sCNT}, 0
L_poll2:
""")
    for i in range(4):
        a(f"  buffer_load_dwordx4 {vr(G+4*i,4)}, v4, {srd(rWS)}, s{sT0} offen offset:{i*1024} {ld_flags}")
    a(f"  s_add_u32 s{sCNT}, s{sCNT}, 1")
    a("  s_waitcnt vmcnt(0)")
    a(f"  v_cmp_ne_u32 vcc, s{sTAG}, v{G+1}")
    for k in range(1, 8):
        reg = G + 4*(k>>1) + (1 if (k & 1) == 0 else 3)
        a(f"  v_cmp_ne_u32 s[{sT2}:{sT2+1}], s{sTAG}, v{reg}")
        a("  s_nop 1")
        a(f"  s_or_b64 vcc, vcc, s[{sT2}:{sT2+1}]")
    a(f"""  s_cbranch_vccz L_got2
  s_cmp_lt_u32 s{sCNT}, {spin_limit}
  s_cbranch_scc1 L_poll2
L_got2:
  v_add_f32 v5, v{G}, v{G+4}
  v_add_f32 v6, v{G+2}, v{G+6}
  v_add_f32 v7, v{G+8}, v{G+12}
  v_add_f32 v{G+1}, v{G+10}, v{G+14}
  v_add_f32 v5, v5, v7
  v_add_f32 v6, v6, v{G+1}
  s_nop 1
  v_add_f32_dpp v5, v5, v5 row_ror:4 row_mask:0xf bank_mask:0xf
  v_add_f32_dpp v6, v6, v6 row_ror:4 row_mask:0xf bank_mask:0xf
  s_nop 1
  v_add_f32_dpp v5, v5, v5 row_ror:8 row_mask:0xf bank_mask:0xf
  v_add_f32_dpp v6, v6, v6 row_ror:8 row_mask:0xf bank_mask:0xf
  s_nop 0
  v_mov_b32 v7, v5
  v_mov_b32 v{G}, v6
  s_nop 1
  v_permlane16_swap_b32 v5, v7
  v_permlane16_swap_b32 v6, v{G}
  s_nop 1
  v_add_f32 v5, v5, v7
  v_add_f32 v6, v6, v{G}
  v_mov_b32 v7, v5
  v_mov_b32 v{G}, v6
  s_nop 1
  v_permlane32_swap_b32 v5, v7
  v_permlane32_swap_b32 v6, v{G}
  s_nop 1
  v_add_f32 v5, v5, v7
  v_add_f32 v6, v6, v{G}
  v_cvt_pk_bf16_f32 v5, v5, v6
  v_lshlrev_b32 v4, 2, v{vL}
  s_mul_i32 s{sT0}, s{sB}, 1152
  s_lshl_b32 s{sT2}, s{sT1}, 4
  s_add_u32 s{sT0}, s{sT0}, s{sT2}
  s_mov_b32 exec_lo, 0xf
  s_mov_b32 exec_hi, 0
  buffer_store_dword v5, v4, {srd(rO)}, s{sT0} offen
  s_cmp_lg_u32 s{sT1}, 0
  s_cbranch_scc1 L_fin0
  s_mov_b32 exec_lo, 1
  v_mov_b32 v5, s{sTAG}
  v_mov_b32 v4, 0
  s_lshl_b32 s{sT0}, s{sB}, 8
  buffer_store_dword v5, v4, {srd(rWS)}, s{sT0} offen
L_fin0:
  s_mov_b64 exec, -1
L_fin:
""")
    if stamps:
        stamp('fin')
        a(f"""  s_waitcnt vmcnt(0)
  s_memrealtime s[{sST+14}:{sST+15}]
  s_lshl_b32 s{sT0}, s2, 4
  s_add_u32 s{sT0}, s{sT0}, s3
  s_lshl_b32 s{sT0}, s{sT0}, 6
  s_add_u32 s{sT2}, s{sWS}, s{sT0}
  s_addc_u32 s{sT3}, s{sWS+1}, 0
  s_add_u32 s{sT2}, s{sT2}, {W_STAMP}
  s_addc_u32 s{sT3}, s{sT3}, 0
  s_waitcnt lgkmcnt(0)
  s_mov_b64 exec, 1
  v_mov_b32 v4, 0
""")
        for i in range(4):
            for k in range(4):
                a(f"  v_mov_b32 v{8+k}, s{sST+4*i+k}")
            a(f"  global_store_dwordx4 v4, v[8:11], s[{sT2}:{sT2+1}] offset:{16*i}")
            a("  s_nop 1")
    a("L_end:")
    a("  s_endpgm")
    a(kernel_desc(NAME, 128, 96 if stamps else 64+2, accum=128))
    open(fname, 'w').write(a.text())

ST_A = ['start','bb','gotq','bmax','bd','be','fin']
ST_B = ['start','bmax','woissued','pvdone','added','bd','be']
if __name__ == '__main__':
    gen('k1.s')
    gen('k1_st.s', stamps=ST_A)
    gen('k1_stb.s', stamps=ST_B)
```

```python
import sys, math, struct
from asmlib import *

L_K    = 0
L_QP   = 131072
L_QF   = L_QP + 9*1024
L_FLAG = L_QF + 512
L_MX   = L_FLAG + 64
L_LL   = L_MX + 128
L_OT   = L_LL + 128
L_END  = L_OT + 128
LDS_BYTES = (L_END + 255)//256*256
W_EPOCH = 0
W_X0 = 0x10000
W_X1 = 0x40000
W_X2 = 0x100000
W_SIZE = 0x200000
W_STAMP = 256 << 20
SCALE = (128 ** -0.5) * math.log2(math.e)
def f32hex(x): return '0x%08x' % struct.unpack('<I', struct.pack('<f', x))[0]

sX, sK, sV, sWQ, sWO, sOUT, sWS = 4, 6, 8, 10, 12, 14, 16
sEP = 18
sTAG = 19
rK, rV, rWQ, rWO, rWS, rX, rO = 20, 24, 28, 32, 36, 40, 44
sHKV, sB, sS, sROT = 48, 49, 50, 51
sT0, sT1, sT2, sT3 = 52, 53, 54, 55
sP0, sP1 = 56, 57
sCNT = 58
sSLAB = 59
sSRC = 60
sGRP = 61
sSC = 62
sFF = 63
sST = 64
def srd(r): return f"s[{r}:{r+3}]"

vL = 0
vTAG = 1
vSEL = 8
vV = 16
vW = 48
vXD = 80
vACC = 84
vQF = 88
vKF = 104
vS = 120
def vr(a, n): return f"v[{a}:{a+n-1}]"

def gen(fname, stamps=None, spin_limit=20000, st_flags='sc1', ld_flags='sc1', stream='nt', wflag='nt',
        vpre=14, poll_sleep=0, wo_first=7):
    a = Asm()
    hdr = open('standalone__sliding_block_cached__decode.s.ref').read().split('; Override launch')[0]
    a(hdr.rstrip('\n'))
    if stamps: a("; stamps=4096,8")
    a(prologue(NAME, f'; @launch grid=(256,1,1) block=(1024,1,1) lds={LDS_BYTES}'))
    def stamp(name):
        if stamps and name in stamps:
            i = stamps.index(name)
            a(f"  s_memrealtime s[{sST+2*i}:{sST+2*i+1}]")
    def tagcheck(words, tmp):
        n = len(words)//2
        for i in range(n):
            a(f"  v_bitop3_b32 v{tmp+i}, v{words[2*i]}, v{words[2*i+1]}, v{vTAG} bitop3:0x7e")
        regs = [tmp+i for i in range(n)]
        while len(regs) > 1:
            nxt = []
            i = 0
            while i < len(regs):
                if i + 2 < len(regs):
                    a(f"  v_or3_b32 v{regs[i]}, v{regs[i]}, v{regs[i+1]}, v{regs[i+2]}"); nxt.append(regs[i]); i += 3
                elif i + 1 < len(regs):
                    a(f"  v_or_b32 v{regs[i]}, v{regs[i]}, v{regs[i+1]}"); nxt.append(regs[i]); i += 2
                else:
                    nxt.append(regs[i]); i += 1
            regs = nxt
        a(f"  v_and_b32 v{regs[0]}, s{sFF}, v{regs[0]}")
        a(f"  v_cmp_ne_u32 vcc, 0, v{regs[0]}")
    def pollloop(label, loads, words, tmp):
        a(f"  s_mov_b32 s{sCNT}, 0")
        a(f"{label}:")
        loads()
        a(f"  s_add_u32 s{sCNT}, s{sCNT}, 1")
        a("  s_waitcnt vmcnt(0)")
        tagcheck(words, tmp)
        a(f"  s_cbranch_vccz {label}_got")
        if poll_sleep: a(f"  s_sleep {poll_sleep}")
        a(f"  s_cmp_lt_u32 s{sCNT}, {spin_limit}")
        a(f"  s_cbranch_scc1 {label}")
        a(f"{label}_got:")
    stamp('start')
    a(f"""
  s_cmp_ge_u32 s2, 256
  s_cbranch_scc1 L_end
  s_load_dwordx8 s[4:11], s[0:1], 0
  s_load_dwordx4 s[12:15], s[0:1], 32
  s_load_dwordx2 s[16:17], s[0:1], 56
  v_lshrrev_b32 v1, 6, v0
  v_and_b32 v0, 63, v0
  v_readfirstlane_b32 s3, v1
  s_and_b32 s{sT0}, s2, 7
  s_lshr_b32 s{sROT}, s2, 3
  s_and_b32 s{sT1}, s{sROT}, 1
  s_lshl_b32 s{sT1}, s{sT1}, 3
  s_add_u32 s{sHKV}, s{sT0}, s{sT1}
  s_lshr_b32 s{sT1}, s{sROT}, 1
  s_lshr_b32 s{sB}, s{sT1}, 2
  s_and_b32 s{sS}, s{sT1}, 3
  s_lshl_b32 s{sGRP}, s{sB}, 4
  s_add_u32 s{sGRP}, s{sGRP}, s{sHKV}       ; b*16+hkv
  s_lshl_b32 s{sSLAB}, s{sGRP}, 21
  s_lshl_b32 s{sT1}, s{sS}, 17
  s_add_u32 s{sSLAB}, s{sSLAB}, s{sT1}
  s_add_u32 s{sSLAB}, s{sSLAB}, 0x180000
  s_lshl_b32 s{sSRC}, s{sHKV}, 2
  s_add_u32 s{sSRC}, s{sSRC}, s{sS}         ; hkv*4+s
  s_lshl_b32 s{sP0}, s3, 1
  s_add_u32 s{sP0}, s{sP0}, s{sROT}
  s_add_u32 s{sP1}, s{sP0}, 1
  s_and_b32 s{sP0}, s{sP0}, 31
  s_and_b32 s{sP1}, s{sP1}, 31
  s_lshl_b32 s{sP0}, s{sP0}, 12
  s_lshl_b32 s{sP1}, s{sP1}, 12
  s_cmp_ge_u32 s3, 9
  s_cbranch_scc1 L_noq
""")
    a(f"""
  v_lshrrev_b32 v2, 3, v0                   ; cls
  v_and_b32 v5, 7, v0                       ; c8
  v_mul_u32_u24 v3, {72*8192}, v2
  v_lshl_add_u32 v3, v5, 4, v3
  v_mul_u32_u24 v4, 144, v2                 ; x voffset
  s_lshl_b32 s{sT0}, s{sHKV}, 9
  s_lshl_b32 s{sT1}, s{sS}, 7
  s_add_u32 s{sT0}, s{sT0}, s{sT1}
  s_mul_i32 s{sT1}, s{sB}, 1152
  s_lshl_b32 s{sT2}, s3, 4
  s_add_u32 s{sT1}, s{sT1}, s{sT2}          ; x soffset = b*1152 + w*16
  s_lshl_b32 s{sT2}, s3, 16                 ; w*8 rows * 8192
  s_waitcnt lgkmcnt(0)
  s_add_u32 s{rWQ}, s{sWQ}, s{sT0}
  s_addc_u32 s{rWQ+1}, s{sWQ+1}, 0
  s_and_b32 s{rWQ+1}, s{rWQ+1}, 0xffff
  s_sub_u32 s{rWQ+2}, {576*8192}, s{sT0}
  s_mov_b32 s{rWQ+3}, 0x20000
  s_mov_b32 s{rX}, s{sX}
  s_and_b32 s{rX+1}, s{sX+1}, 0xffff
  s_mov_b32 s{rX+2}, 4608
  s_mov_b32 s{rX+3}, 0x20000
""")
    for g in range(8):
        a(f"  buffer_load_dwordx4 {vr(vW+4*g,4)}, v3, {srd(rWQ)}, s{sT2} offen {wflag}")
        if g < 7: a(f"  s_add_u32 s{sT2}, s{sT2}, 8192")
        if g == 0: a(f"  buffer_load_dwordx4 {vr(vXD,4)}, v4, {srd(rX)}, s{sT1} offen")
    a("  s_branch L_common")
    def build_k_srd():
        a(f"""  s_add_u32 s{rK}, s{sK}, s{sSLAB}
  s_addc_u32 s{rK+1}, s{sK+1}, 0
  s_and_b32 s{rK+1}, s{rK+1}, 0xffff
  s_mov_b32 s{rK+2}, 0x20000
  s_mov_b32 s{rK+3}, 0x20000""")
    def build_v_srd():
        a(f"""  s_add_u32 s{rV}, s{sV}, s{sSLAB}
  s_addc_u32 s{rV+1}, s{sV+1}, 0
  s_and_b32 s{rV+1}, s{rV+1}, 0xffff
  s_mov_b32 s{rV+2}, 0x20000
  s_mov_b32 s{rV+3}, 0x20000""")
    def k_off():
        a(f"""  v_lshrrev_b32 v4, 4, v{vL}                ; kgl
  v_and_b32 v5, 15, v{vL}
  v_lshlrev_b32 v6, 2, v4
  v_xor_b32 v5, v5, v6                      ; (l&15) ^ 4kgl
  v_lshlrev_b32 v5, 4, v5
  v_lshl_add_u32 v4, v4, 8, v5              ; voff_0
  v_xor_b32 v5, 16, v4
  v_xor_b32 v6, 32, v4
  v_xor_b32 v7, 48, v4""")
    def k_dma():
        a(f"""  s_lshl_b32 s{sT0}, s3, 13
  s_mov_b32 m0, s{sT0}
  s_add_u32 s{sT0}, s{sT0}, 4096""")
        for t in range(2):
            if t == 1:
                a(f"  s_mov_b32 m0, s{sT0}")
                a("  s_nop 0")
            for i in range(4):
                a(f"  buffer_load_dwordx4 v{4+i}, {srd(rK)}, s{sP0+t} offen offset:{i*1024} {stream} lds")
    def v_loads():
        a(f"  v_lshlrev_b32 v4, 4, v{vL}")
        for t in range(2):
            for r in range(4):
                a(f"  buffer_load_dwordx4 {vr(vV+16*t+4*r,4)}, v4, {srd(rV)}, s{sP0+t} offen offset:{r*1024} {stream}")
    a("L_noq:")
    k_off()
    a("  s_waitcnt lgkmcnt(0)")
    build_k_srd()
    k_dma()
    build_v_srd()
    a(f"  s_cmp_gt_u32 s3, {vpre}")
    a("  s_cbranch_scc1 L_novpre")
    v_loads()
    a("L_novpre:")
    a(f"""  s_cmp_lg_u32 s3, 9
  s_cbranch_scc1 L_common2
  v_mov_b32 v2, 0
  v_mov_b32 v4, {L_FLAG}
  ds_write_b32 v4, v2
  s_branch L_common2
""")
    a("L_common:")
    build_k_srd()
    build_v_srd()
    a("L_common2:")
    a(f"""  s_lshl_b32 s{sT0}, s{sB}, 8
  s_load_dword s{sEP}, s[{sWS}:{sWS+1}], s{sT0}
  s_mov_b32 s{rWS}, s{sWS}
  s_and_b32 s{rWS+1}, s{sWS+1}, 0xffff
  s_mov_b32 s{rWS+2}, {W_SIZE}
  s_mov_b32 s{rWS+3}, 0x20000
  s_mul_i32 s{sT0}, s{sSRC}, {64*1152}
  s_add_u32 s{rWO}, s{sWO}, s{sT0}
  s_addc_u32 s{rWO+1}, s{sWO+1}, 0
  s_and_b32 s{rWO+1}, s{rWO+1}, 0xffff
  s_mov_b32 s{rWO+2}, {64*1152}
  s_mov_b32 s{rWO+3}, 0x20000
  s_mov_b32 s{rO}, s{sOUT}
  s_and_b32 s{rO+1}, s{sOUT+1}, 0xffff
  s_mov_b32 s{rO+2}, 4608
  s_mov_b32 s{rO+3}, 0x20000
  s_mov_b32 s{sSC}, {f32hex(SCALE)}
  s_movk_i32 s{sFF}, 0xff
  v_and_b32 v4, 1, v{vL}
  v_cmp_eq_u32 vcc, 1, v4
  v_mov_b32 v5, 0x0c0c0100
  v_mov_b32 v6, 0x01000c0c
  v_cndmask_b32 v5, v5, v6, vcc             ; e=0 pattern
  v_mov_b32 v6, 0x0c0c0302
  v_mov_b32 v7, 0x03020c0c
  v_cndmask_b32 v6, v6, v7, vcc             ; e=1 pattern
  v_bfe_u32 v4, v{vL}, 1, 2                 ; (l&7)>>1
  v_mov_b32 v7, 0x0c0c0c0c
""")
    for i in range(4):
        a(f"""  v_cmp_eq_u32 vcc, {i}, v4
  s_nop 1
  v_cndmask_b32 v{vSEL+2*i}, v7, v5, vcc
  v_cndmask_b32 v{vSEL+2*i+1}, v7, v6, vcc""")
    def diag_mfma(src_pairs, data, acc, waits, tmpA=(vQF, vQF+4)):
        for g in range(8):
            A = tmpA[g & 1]
            for i in range(4):
                a(f"  v_perm_b32 v{A+i}, v{src_pairs+(g>>1)}, v{src_pairs+(g>>1)}, v{vSEL+2*i+(g&1)}")
            w = waits(g)
            a(f"  {w}" if w else "  s_nop 0")
            a("  s_nop 0")
            a(f"  v_mfma_f32_16x16x32_bf16 {vr(acc,4)}, {vr(A,4)}, {vr(data(g),4)}, {vr(acc,4)}")
    a(f"""  s_cmp_ge_u32 s3, 9
  s_cbranch_scc1 L_bb
  v_mov_b32 v{vACC}, 0
  v_mov_b32 v{vACC+1}, 0
  v_mov_b32 v{vACC+2}, 0
  v_mov_b32 v{vACC+3}, 0
  s_waitcnt vmcnt(7)
""")
    diag_mfma(vXD, lambda g: vW+4*g, vACC, lambda g: f"s_waitcnt vmcnt({7-g})")
    a(f"""  v_lshlrev_b32 v4, 4, v{vL}
  s_lshl_b32 s{sT0}, s3, 10
  s_add_u32 s{sT0}, s{sT0}, {L_QP}
  v_add_u32 v4, s{sT0}, v4
  s_nop 7
  ds_write_b128 v4, {vr(vACC,4)}
L_bb:
  s_waitcnt lgkmcnt(0)
  s_add_u32 s{sEP}, s{sEP}, 1
  s_and_b32 s{sTAG}, s{sEP}, 0xff
  v_mov_b32 v{vTAG}, s{sTAG}
  s_barrier
""")
    stamp('bb')
    a(f"""  s_cmp_lg_u32 s3, 15
  s_cbranch_scc1 L_noex
  s_setprio 3
  v_lshrrev_b32 v4, 3, v{vL}
  v_bfe_u32 v5, v{vL}, 2, 1
  v_lshl_add_u32 v4, v5, 4, v4              ; lane' = (l>>3) + 16*((l>>2)&1)
  v_lshlrev_b32 v4, 4, v4
  v_and_b32 v5, 3, v{vL}
  v_lshl_add_u32 v4, v5, 2, v4
  v_add_u32 v4, {L_QP}, v4
""")
    for w in range(9):
        a(f"  ds_read_b32 v{vQF+2*w}, v4 offset:{w*1024}")
        a(f"  ds_read_b32 v{vQF+2*w+1}, v4 offset:{w*1024+640}")
        if w == 6: a("  s_waitcnt lgkmcnt(0)")
    a("  s_waitcnt lgkmcnt(0)")
    def treesum(regs):
        while len(regs) > 1:
            nxt = []
            for i in range(0, len(regs)-1, 2):
                a(f"  v_add_f32 v{regs[i]}, v{regs[i]}, v{regs[i+1]}")
                nxt.append(regs[i])
            if len(regs) & 1: nxt.append(regs[-1])
            regs = nxt
        return regs[0]
    q = treesum([vQF+i for i in range(18)])
    a(f"""  v_cvt_pk_bf16_f32 v6, v{q}, v{q}
  v_lshlrev_b32 v4, 2, v{vL}
  s_lshl_b32 s{sT0}, s{sGRP}, 10
  s_add_u32 s{sT0}, s{sT0}, {W_X0}
  s_lshl_b32 s{sT1}, s{sS}, 8
  s_add_u32 s{sT1}, s{sT1}, s{sT0}
  v_and_b32 v6, 0xffff0000, v6
  v_or_b32 v6, s{sTAG}, v6
  buffer_store_dword v6, v4, {srd(rWS)}, s{sT1} offen {st_flags}
  v_lshlrev_b32 v4, 4, v{vL}
""")
    pollloop('L_poll0', lambda: a(f"  buffer_load_dwordx4 {vr(vQF,4)}, v4, {srd(rWS)}, s{sT0} offen {ld_flags}"),
             [vQF, vQF+1, vQF+2, vQF+3], vQF+4)
    a(f"""  s_mov_b32 s{sT2}, 0x07060302
  v_perm_b32 v{vQF}, v{vQF+1}, v{vQF}, s{sT2}
  v_perm_b32 v{vQF+1}, v{vQF+3}, v{vQF+2}, s{sT2}
  v_lshlrev_b32 v4, 3, v{vL}
  v_add_u32 v4, {L_QF}, v4
  ds_write_b64 v4, {vr(vQF,2)}
  v_mov_b32 v5, 1
  v_mov_b32 v4, {L_FLAG}
  s_waitcnt lgkmcnt(0)
  ds_write_b32 v4, v5
  s_setprio 0
L_noex:
""")
    stamp('exdone')
    a("  s_cmp_ge_u32 s3, 9")
    a("  s_cbranch_scc1 L_kdone")
    k_off()
    k_dma()
    a("L_kdone:")
    a(f"""  s_cmp_lt_u32 s3, 9
  s_cbranch_scc1 L_dov
  s_cmp_le_u32 s3, {vpre}
  s_cbranch_scc1 L_vdone
L_dov:""")
    v_loads()
    a("L_vdone:")
    stamp('vissued')
    a(f"""  v_mov_b32 v4, {L_FLAG}
  s_mov_b32 s{sCNT}, 0
L_spin:
  ds_read_b32 v5, v4
  s_add_u32 s{sCNT}, s{sCNT}, 1
  s_waitcnt lgkmcnt(0)
  v_readfirstlane_b32 s{sT0}, v5
  s_cmp_eq_u32 s{sT0}, 1
  s_cbranch_scc1 L_gotq
  s_sleep 4
  s_cmp_lt_u32 s{sCNT}, {spin_limit*4}
  s_cbranch_scc1 L_spin
L_gotq:
""")
    stamp('gotq')
    a(f"""  v_bfe_u32 v4, v{vL}, 3, 1                 ; h
  v_lshrrev_b32 v5, 4, v{vL}                ; kg
  v_lshlrev_b32 v4, 8, v4
  v_lshl_add_u32 v4, v5, 4, v4
  v_add_u32 v4, {L_QF}, v4
""")
    for st in range(4):
        a(f"  ds_read_b128 {vr(vQF+4*st,4)}, v4 offset:{st*64}")
    a(f"""  v_and_b32 v6, 15, v{vL}                   ; m
  v_xor_b32 v5, v5, v6                      ; kg ^ m
  v_lshlrev_b32 v5, 4, v5
  v_and_b32 v7, 3, v6
  v_lshlrev_b32 v7, 2, v7
  v_lshrrev_b32 v6, 2, v6
  v_add_u32 v6, v6, v7                      ; rho
  v_lshl_add_u32 v4, v6, 8, v5
  s_lshl_b32 s{sT0}, s3, 13
  v_add_u32 v4, s{sT0}, v4
  v_xor_b32 v5, 64, v4
  v_xor_b32 v6, 128, v4
  v_xor_b32 v7, 192, v4
""")
    for i in range(8): a(f"  v_mov_b32 v{vS+i}, 0")
    a("  s_waitcnt vmcnt(8)")
    stamp('karr')
    for t in range(2):
        for st in range(4):
            a(f"  ds_read_b128 {vr(vKF+4*st,4)}, v{4+st} offset:{t*4096}")
        for st in range(4):
            a(f"  s_waitcnt lgkmcnt({3-st})")
            a(f"  v_mfma_f32_16x16x32_bf16 {vr(vS+4*t,4)}, {vr(vKF+4*st,4)}, {vr(vQF+4*st,4)}, {vr(vS+4*t,4)}")
    vM, vLs, vP = vQF, vQF+1, vQF+2
    vT = vQF+6
    a(f"""  s_nop 7
  v_max3_f32 v{vM}, v{vS}, v{vS+1}, v{vS+2}
  v_max3_f32 v{vT}, v{vS+3}, v{vS+4}, v{vS+5}
  v_max3_f32 v{vM}, v{vM}, v{vS+6}, v{vS+7}
  v_max_f32 v{vM}, v{vM}, v{vT}
  v_mov_b32 v{vT}, v{vM}
  s_nop 1
  v_permlane16_swap_b32 v{vM}, v{vT}
  s_nop 1
  v_max_f32 v{vM}, v{vM}, v{vT}
  v_mov_b32 v{vT}, v{vM}
  s_nop 1
  v_permlane32_swap_b32 v{vM}, v{vT}
  s_nop 1
  v_max_f32 v{vM}, v{vM}, v{vT}
  v_mul_f32 v{vM}, s{sSC}, v{vM}
  v_bfe_u32 v4, v{vL}, 3, 1
  v_lshlrev_b32 v4, 2, v4
  s_lshl_b32 s{sT0}, s3, 3
  s_add_u32 s{sT0}, s{sT0}, {L_MX}
  v_add_u32 v4, s{sT0}, v4
  s_mov_b32 exec_lo, 0x101
  s_mov_b32 exec_hi, 0
  ds_write_b32 v4, v{vM}
  s_mov_b64 exec, -1
""")
    for i in range(8):
        a(f"  v_fma_f32 v{vS+i}, v{vS+i}, s{sSC}, -v{vM}")
    for i in range(8):
        a(f"  v_exp_f32 v{vS+i}, v{vS+i}")
    a("  s_nop 0")
    a(f"""  v_add_f32 v{vLs}, v{vS}, v{vS+1}
  v_add_f32 v{vT}, v{vS+2}, v{vS+3}
  v_add_f32 v{vT+1}, v{vS+4}, v{vS+5}
  v_add_f32 v{vT+2}, v{vS+6}, v{vS+7}
  v_add_f32 v{vLs}, v{vLs}, v{vT}
  v_add_f32 v{vT+1}, v{vT+1}, v{vT+2}
  v_add_f32 v{vLs}, v{vLs}, v{vT+1}
  v_cvt_pk_bf16_f32 v{vP}, v{vS}, v{vS+1}
  v_cvt_pk_bf16_f32 v{vP+1}, v{vS+2}, v{vS+3}
  v_cvt_pk_bf16_f32 v{vP+2}, v{vS+4}, v{vS+5}
  v_cvt_pk_bf16_f32 v{vP+3}, v{vS+6}, v{vS+7}
  v_mov_b32 v{vT}, v{vLs}
  s_nop 1
  v_permlane16_swap_b32 v{vLs}, v{vT}
  s_nop 1
  v_add_f32 v{vLs}, v{vLs}, v{vT}
  v_mov_b32 v{vT}, v{vLs}
  s_nop 1
  v_permlane32_swap_b32 v{vLs}, v{vT}
  s_nop 1
  v_add_f32 v{vLs}, v{vLs}, v{vT}
  s_waitcnt lgkmcnt(0)
  s_barrier
""")
    stamp('bmax')
    a(f"""  s_cmp_lt_u32 s3, {wo_first}
  s_cbranch_scc1 L_nowo
  v_lshrrev_b32 v4, 3, v{vL}
  v_mul_u32_u24 v4, 9216, v4
  v_and_b32 v5, 7, v{vL}
  v_lshl_add_u32 v4, v5, 4, v4
  s_sub_u32 s{sT0}, s3, {wo_first}
  s_lshl_b32 s{sT0}, s{sT0}, 7
  s_add_u32 s{sT1}, s{sT0}, 4608
""")
    for g in range(8):
        a(f"  buffer_load_dwordx4 {vr(vW+4*g,4)}, v4, {srd(rWO)}, s{sT0 if g < 4 else sT1} offen offset:{(g&3)*1152} {wflag}")
    a("L_nowo:")
    stamp('woissued')
    vF, vMG = vQF+6, vQF+7
    a(f"""  v_and_b32 v4, 15, v{vL}
  v_lshlrev_b32 v4, 3, v4
  v_lshrrev_b32 v5, 5, v{vL}                ; h' = l>>5
  v_lshl_add_u32 v4, v5, 2, v4
  v_add_u32 v4, {L_MX}, v4
  ds_read_b32 v{vMG}, v4
  s_lshl_b32 s{sT0}, s3, 3
  s_add_u32 s{sT0}, s{sT0}, {L_MX}
  v_lshlrev_b32 v5, 2, v5
  v_add_u32 v5, s{sT0}, v5
  ds_read_b32 v{vF}, v5                     ; own m_w[h']
  v_mov_b32 v{vACC}, 0
  v_mov_b32 v{vACC+1}, 0
  v_mov_b32 v{vACC+2}, 0
  v_mov_b32 v{vACC+3}, 0
  s_waitcnt lgkmcnt(0)
  v_max_f32_dpp v{vMG}, v{vMG}, v{vMG} row_ror:8 row_mask:0xf bank_mask:0xf
  s_nop 1
  v_max_f32_dpp v{vMG}, v{vMG}, v{vMG} row_ror:4 row_mask:0xf bank_mask:0xf
  s_nop 1
  v_max_f32_dpp v{vMG}, v{vMG}, v{vMG} row_ror:2 row_mask:0xf bank_mask:0xf
  s_nop 1
  v_max_f32_dpp v{vMG}, v{vMG}, v{vMG} row_ror:1 row_mask:0xf bank_mask:0xf
  s_nop 0
  v_sub_f32 v{vF}, v{vF}, v{vMG}
  v_exp_f32 v{vF}, v{vF}
  s_nop 0
  v_mul_f32 v{vLs}, v{vLs}, v{vF}
  v_lshrrev_b32 v5, 5, v{vL}
  v_lshlrev_b32 v5, 2, v5
  s_add_u32 s{sT0}, s{sT0}, {L_LL-L_MX}
  v_add_u32 v5, s{sT0}, v5
  s_mov_b32 exec_lo, 1
  s_mov_b32 exec_hi, 0x100
  ds_write_b32 v5, v{vLs}
  s_mov_b64 exec, -1
  s_cmp_lt_u32 s3, {wo_first}
  s_cbranch_scc1 L_pv0
""")
    tA = (vQF+8, vQF+12)
    diag_mfma(vP, lambda g: vV+4*g, vACC, lambda g: f"s_waitcnt vmcnt({15-g})", tA)
    a("  s_branch L_pvd")
    a("L_pv0:")
    diag_mfma(vP, lambda g: vV+4*g, vACC, lambda g: f"s_waitcnt vmcnt({7-g})", tA)
    a("L_pvd:")
    stamp('pvdone')
    a(f"""  v_lshlrev_b32 v4, 4, v{vL}
  s_lshl_b32 s{sT0}, s3, 13
  v_add_u32 v4, s{sT0}, v4
  s_nop 5
  v_mul_f32 v{vACC}, v{vACC}, v{vF}
  v_mul_f32 v{vACC+1}, v{vACC+1}, v{vF}
  v_mul_f32 v{vACC+2}, v{vACC+2}, v{vF}
  v_mul_f32 v{vACC+3}, v{vACC+3}, v{vF}
  ds_write_b128 v4, {vr(vACC,4)}
  s_waitcnt lgkmcnt(0)
  s_barrier
""")
    stamp('bd')
    G = vKF
    a(f"""  s_cmp_ge_u32 s3, 4
  s_cbranch_scc1 L_nopub1
  v_lshrrev_b32 v4, 3, v{vL}
  v_bfe_u32 v5, v{vL}, 2, 1
  v_lshl_add_u32 v4, v5, 4, v4               ; (l>>3) + 16*b4
  s_lshr_b32 s{sT0}, s3, 1                   ; h
  s_and_b32 s{sT1}, s3, 1
  s_lshl_b32 s{sT2}, s{sT0}, 5
  s_lshl_b32 s{sT1}, s{sT1}, 3
  s_add_u32 s{sT1}, s{sT1}, s{sT2}           ; 32h + 8(s'&1)
  v_add_u32 v4, s{sT1}, v4                   ; lane'
  v_and_b32 v5, 3, v{vL}
  v_lshlrev_b32 v5, 2, v5
  v_lshl_add_u32 v4, v4, 4, v5               ; lane'*16 + r*4
  v_add_u32 v5, 0x10000, v4
""")
    for w in range(16):
        a(f"  ds_read_b32 v{vV+w}, v{4 if w < 8 else 5} offset:{(w&7)*8192}")
        if w == 13: pass
    a(f"""  v_and_b32 v6, 15, v{vL}
  v_lshlrev_b32 v6, 3, v6
  s_lshl_b32 s{sT1}, s{sT0}, 2
  s_add_u32 s{sT1}, s{sT1}, {L_LL}
  v_add_u32 v6, s{sT1}, v6
  s_waitcnt lgkmcnt(8)
  ds_read_b32 v7, v6                         ; l_w[h] for w = l&15
  v_readlane_b32 s{sT1}, v{vMG}, s{sT2}
  s_lshl_b32 s{sT0}, s{sGRP}, 13
  s_add_u32 s{sT0}, s{sT0}, {W_X1}
  s_lshl_b32 s{sT3}, s3, 11                  ; dst*2048
  s_add_u32 s{sT0}, s{sT0}, s{sT3}
  s_lshl_b32 s{sT3}, s{sS}, 9                ; src*512
  s_add_u32 s{sT0}, s{sT0}, s{sT3}
  v_and_b32 v5, 1, v{vL}
  v_cmp_eq_u32 vcc, 1, v5
  v_lshlrev_b32 v4, 3, v{vL}
  s_waitcnt lgkmcnt(0)
  v_add_f32_dpp v7, v7, v7 row_ror:8 row_mask:0xf bank_mask:0xf
""")
    a(f"  v_add_f32 v{vV}, v{vV}, v{vV+1}")
    a(f"  v_add_f32 v{vV+2}, v{vV+2}, v{vV+3}")
    a("  v_add_f32_dpp v7, v7, v7 row_ror:4 row_mask:0xf bank_mask:0xf")
    a(f"  v_add_f32 v{vV+4}, v{vV+4}, v{vV+5}")
    a(f"  v_add_f32 v{vV+6}, v{vV+6}, v{vV+7}")
    a("  v_add_f32_dpp v7, v7, v7 row_ror:2 row_mask:0xf bank_mask:0xf")
    a(f"  v_add_f32 v{vV+8}, v{vV+8}, v{vV+9}")
    a(f"  v_add_f32 v{vV+10}, v{vV+10}, v{vV+11}")
    a("  v_add_f32_dpp v7, v7, v7 row_ror:1 row_mask:0xf bank_mask:0xf")
    a(f"  v_add_f32 v{vV+12}, v{vV+12}, v{vV+13}")
    a(f"  v_add_f32 v{vV+14}, v{vV+14}, v{vV+15}")
    o = treesum([vV+2*i for i in range(8)])
    a(f"""  v_mov_b32 v6, s{sT1}
  v_cndmask_b32 v6, v6, v7, vcc
  v_bfi_b32 v{G}, s{sFF}, v{vTAG}, v{o}
  v_bfi_b32 v{G+1}, s{sFF}, v{vTAG}, v6
  buffer_store_dwordx2 {vr(G,2)}, v4, {srd(rWS)}, s{sT0} offen {st_flags}
L_nopub1:
  s_cmp_lg_u32 s3, 4
  s_cbranch_scc1 L_nocons1
  s_lshl_b32 s{sT0}, s{sGRP}, 13
  s_add_u32 s{sT0}, s{sT0}, {W_X1}
  s_lshl_b32 s{sT1}, s{sS}, 11
  s_add_u32 s{sT0}, s{sT0}, s{sT1}
  v_lshlrev_b32 v4, 3, v{vL}
""")
    def l1loads():
        for src in range(4):
            a(f"  buffer_load_dwordx2 {vr(G+2*src,2)}, v4, {srd(rWS)}, s{sT0} offen offset:{src*512} {ld_flags}")
    pollloop('L_poll1', l1loads, [G+i for i in range(8)], G+8)
    for src in range(4):
        a(f"  v_mov_b32_dpp v{G+8+src}, v{G+2*src+1} quad_perm:[0,0,2,2] row_mask:0xf bank_mask:0xf")
        a(f"  v_mov_b32_dpp v{G+12+src}, v{G+2*src+1} quad_perm:[1,1,3,3] row_mask:0xf bank_mask:0xf")
    a(f"""  v_max3_f32 v5, v{G+8}, v{G+9}, v{G+10}
  v_max_f32 v5, v5, v{G+11}
""")
    for src in range(4):
        a(f"  v_sub_f32 v{G+8+src}, v{G+8+src}, v5")
    for src in range(4):
        a(f"  v_exp_f32 v{G+8+src}, v{G+8+src}")
    a(f"""  s_nop 0
  v_mul_f32 v6, v{G+8}, v{G+12}
  v_mul_f32 v7, v{G+8}, v{G}
  v_fmac_f32 v6, v{G+9}, v{G+13}
  v_fmac_f32 v7, v{G+9}, v{G+2}
  v_fmac_f32 v6, v{G+10}, v{G+14}
  v_fmac_f32 v7, v{G+10}, v{G+4}
  v_fmac_f32 v6, v{G+11}, v{G+15}
  v_fmac_f32 v7, v{G+11}, v{G+6}
  v_rcp_f32 v6, v6
  v_lshlrev_b32 v4, 1, v{vL}
  v_add_u32 v4, {L_OT}, v4
  v_mul_f32 v7, v7, v6
  v_cvt_pk_bf16_f32 v7, v7, v7
  ds_write_b16 v4, v7
L_nocons1:
  s_waitcnt lgkmcnt(0)
  s_barrier
""")
    stamp('be')
    a(f"""  s_cmp_lt_u32 s3, {wo_first}
  s_cbranch_scc1 L_noy
  v_lshrrev_b32 v4, 3, v{vL}
  v_lshlrev_b32 v4, 4, v4
  v_add_u32 v4, {L_OT}, v4
  ds_read_b128 {vr(vXD,4)}, v4
  v_mov_b32 v{vACC}, 0
  v_mov_b32 v{vACC+1}, 0
  v_mov_b32 v{vACC+2}, 0
  v_mov_b32 v{vACC+3}, 0
  v_bfe_u32 v4, v{vL}, 1, 2
  v_lshlrev_b32 v4, 12, v4
  v_and_b32 v5, 1, v{vL}
  v_lshl_add_u32 v4, v5, 5, v4
  v_bfe_u32 v5, v{vL}, 4, 1
  v_lshl_add_u32 v4, v5, 4, v4
  s_mul_i32 s{sT0}, s{sB}, {36*4096}
  s_add_u32 s{sT0}, s{sT0}, {W_X2}
  s_sub_u32 s{sT1}, s3, {wo_first}
  s_lshl_b32 s{sT1}, s{sT1}, 14
  s_add_u32 s{sT0}, s{sT0}, s{sT1}
  s_lshl_b32 s{sT1}, s{sSRC}, 6
  s_add_u32 s{sT0}, s{sT0}, s{sT1}
  s_waitcnt vmcnt(0) lgkmcnt(0)
""")
    stamp('woarr')
    diag_mfma(vXD, lambda g: vW+4*g, vACC, lambda g: None, (vQF, vQF+4))
    Y = vKF
    a("  s_nop 7")
    for r in range(4):
        a(f"  v_permlane32_swap_b32 v{vACC+r}, v{vQF+8+r}")
    a("  s_nop 1")
    for r in range(4):
        a(f"  v_add_f32_dpp v{Y+r}, v{vQF+8+r}, v{vACC+r} row_ror:8 row_mask:0xf bank_mask:0xf")
    for r in range(4):
        a(f"  v_bfi_b32 v{Y+r}, s{sFF}, v{vTAG}, v{Y+r}")
    a(f"""  s_mov_b32 exec_lo, 0x00ff00ff
  s_mov_b32 exec_hi, 0
  buffer_store_dwordx4 {vr(Y,4)}, v4, {srd(rWS)}, s{sT0} offen {st_flags}
  s_mov_b64 exec, -1
  s_branch L_fin
L_noy:
  s_cmp_lg_u32 s3, 0
  s_cbranch_scc1 L_fin
  s_cmp_ge_u32 s{sSRC}, 36
  s_cbranch_scc1 L_fin
  s_mul_i32 s{sT0}, s{sB}, {36*4096}
  s_add_u32 s{sT0}, s{sT0}, {W_X2}
  s_lshl_b32 s{sT2}, s{sSRC}, 12
  s_add_u32 s{sT0}, s{sT0}, s{sT2}
  v_lshlrev_b32 v4, 4, v{vL}
""")
    def l2loads():
        for i in range(4):
            a(f"  buffer_load_dwordx4 {vr(G+4*i,4)}, v4, {srd(rWS)}, s{sT0} offen offset:{i*1024} {ld_flags}")
    pollloop('L_poll2', l2loads, [G+i for i in range(16)], vQF)
    for r in range(4):
        a(f"  v_add_f32 v{G+r}, v{G+r}, v{G+4+r}")
        a(f"  v_add_f32 v{G+8+r}, v{G+8+r}, v{G+12+r}")
    for r in range(4):
        a(f"  v_add_f32 v{G+r}, v{G+r}, v{G+8+r}")
    a("  s_nop 0")
    for rot in (4, 8):
        for r in range(4):
            a(f"  v_add_f32_dpp v{G+r}, v{G+r}, v{G+r} row_ror:{rot} row_mask:0xf bank_mask:0xf")
    for swp in ('v_permlane16_swap_b32', 'v_permlane32_swap_b32'):
        for r in range(4):
            a(f"  v_mov_b32 v{G+4+r}, v{G+r}")
        a("  s_nop 0")
        for r in range(4):
            a(f"  {swp} v{G+r}, v{G+4+r}")
        a("  s_nop 0")
        for r in range(4):
            a(f"  v_add_f32 v{G+r}, v{G+r}, v{G+4+r}")
    a(f"""  v_cvt_pk_bf16_f32 v6, v{G}, v{G+1}
  v_cvt_pk_bf16_f32 v7, v{G+2}, v{G+3}
  v_lshlrev_b32 v4, 3, v{vL}
  s_mul_i32 s{sT0}, s{sB}, 1152
  s_lshl_b32 s{sT2}, s{sSRC}, 5
  s_add_u32 s{sT0}, s{sT0}, s{sT2}
  s_mov_b32 exec_lo, 0xf
  s_mov_b32 exec_hi, 0
  buffer_store_dwordx2 v[6:7], v4, {srd(rO)}, s{sT0} offen
  s_cmp_lg_u32 s{sSRC}, 0
  s_cbranch_scc1 L_fin0
  s_mov_b32 exec_lo, 1
  v_mov_b32 v5, s{sEP}
  v_mov_b32 v4, 0
  s_lshl_b32 s{sT0}, s{sB}, 8
  buffer_store_dword v5, v4, {srd(rWS)}, s{sT0} offen
L_fin0:
  s_mov_b64 exec, -1
L_fin:
""")
    if stamps:
        stamp('fin')
        a(f"""  s_waitcnt vmcnt(0)
  s_memrealtime s[{sST+14}:{sST+15}]
  s_lshl_b32 s{sT0}, s2, 4
  s_add_u32 s{sT0}, s{sT0}, s3
  s_lshl_b32 s{sT0}, s{sT0}, 6
  s_add_u32 s{sT2}, s{sWS}, s{sT0}
  s_addc_u32 s{sT3}, s{sWS+1}, 0
  s_add_u32 s{sT2}, s{sT2}, {W_STAMP}
  s_addc_u32 s{sT3}, s{sT3}, 0
  s_waitcnt lgkmcnt(0)
  s_mov_b64 exec, 1
  v_mov_b32 v4, 0
""")
        for i in range(4):
            for k in range(4):
                a(f"  v_mov_b32 v{8+k}, s{sST+4*i+k}")
            a(f"  global_store_dwordx4 v4, v[8:11], s[{sT2}:{sT2+1}] offset:{16*i}")
            a("  s_nop 1")
    a("L_end:")
    a("  s_endpgm")
    a(kernel_desc(NAME, 128, 96 if stamps else 66, accum=128))
    open(fname, 'w').write(a.text())

ST_A = ['start','bb','gotq','bmax','pvdone','bd','be']
ST_B = ['start','vissued','karr','woissued','woarr','be','fin']
if __name__ == '__main__':
    gen('k2.s')
    gen('k2_sta.s', stamps=ST_A)
    gen('k2_stb.s', stamps=ST_B)
```

```python
import sys, math, struct
from asmlib import *

L_K    = 0
L_QP   = 131072
L_QF   = L_QP + 9*1024
L_FLAG = L_QF + 512
L_MX   = L_FLAG + 64
L_LL   = L_MX + 128
L_OT   = L_LL + 128
L_END  = L_OT + 128
LDS_BYTES = (L_END + 255)//256*256
W_EPOCH = 0
W_X0 = 0x10000
W_X1 = 0x40000
W_X2 = 0x100000
W_SIZE = 0x200000
W_STAMP = 256 << 20
SCALE = (128 ** -0.5) * math.log2(math.e)
def f32hex(x): return '0x%08x' % struct.unpack('<I', struct.pack('<f', x))[0]

sX, sK, sV, sWQ, sWO, sOUT, sWS = 4, 6, 8, 10, 12, 14, 16
sEP = 18
sTAG = 19
rK, rV, rWQ, rWO, rWS, rX, rO = 20, 24, 28, 32, 36, 40, 44
sHKV, sB, sS, sROT = 48, 49, 50, 51
sT0, sT1, sT2, sT3 = 52, 53, 54, 55
sP0, sP1 = 56, 57
sCNT = 58
sSLAB = 59
sSRC = 60
sGRP = 61
sSC = 62
sFF = 63
sST = 64
def srd(r): return f"s[{r}:{r+3}]"

vL = 0
vTAG = 1
vSEL = 8
vV = 16
vW = 48
vXD = 80
vACC = 84
vQF = 88
vKF = 104
vS = 120
def vr(a, n): return f"v[{a}:{a+n-1}]"

def gen(fname, stamps=None, spin_limit=20000, st_flags='sc1', ld_flags='sc1', stream='nt', wflag='nt',
        vpre=14, poll_sleep=0, wo_first=7, dbgmax=None):
    a = Asm()
    hdr = open('standalone__sliding_block_cached__decode.s.ref').read().split('; Override launch')[0]
    a(hdr.rstrip('\n'))
    if stamps: a("; stamps=4096,8")
    a(prologue(NAME, f'; @launch grid=(256,1,1) block=(1024,1,1) lds={LDS_BYTES}'))
    def stamp(name):
        if stamps and name in stamps:
            i = stamps.index(name)
            a(f"  s_memrealtime s[{sST+2*i}:{sST+2*i+1}]")
    def tagcheck(words, tmp):
        n = len(words)//2
        for i in range(n):
            a(f"  v_bitop3_b32 v{tmp+i}, v{words[2*i]}, v{words[2*i+1]}, v{vTAG} bitop3:0x7e")
        regs = [tmp+i for i in range(n)]
        while len(regs) > 1:
            nxt = []
            i = 0
            while i < len(regs):
                if i + 2 < len(regs):
                    a(f"  v_or3_b32 v{regs[i]}, v{regs[i]}, v{regs[i+1]}, v{regs[i+2]}"); nxt.append(regs[i]); i += 3
                elif i + 1 < len(regs):
                    a(f"  v_or_b32 v{regs[i]}, v{regs[i]}, v{regs[i+1]}"); nxt.append(regs[i]); i += 2
                else:
                    nxt.append(regs[i]); i += 1
            regs = nxt
        a(f"  v_and_b32 v{regs[0]}, s{sFF}, v{regs[0]}")
        a(f"  v_cmp_ne_u32 vcc, 0, v{regs[0]}")
    def pollloop(label, loads, words, tmp):
        a(f"  s_mov_b32 s{sCNT}, 0")
        a(f"{label}:")
        loads()
        a(f"  s_add_u32 s{sCNT}, s{sCNT}, 1")
        a("  s_waitcnt vmcnt(0)")
        tagcheck(words, tmp)
        a(f"  s_cbranch_vccz {label}_got")
        if poll_sleep: a(f"  s_sleep {poll_sleep}")
        a(f"  s_cmp_lt_u32 s{sCNT}, {spin_limit}")
        a(f"  s_cbranch_scc1 {label}")
        a(f"{label}_got:")
    stamp('start')
    a(f"""
  s_cmp_ge_u32 s2, 256
  s_cbranch_scc1 L_end
  s_load_dwordx8 s[4:11], s[0:1], 0
  s_load_dwordx4 s[12:15], s[0:1], 32
  s_load_dwordx2 s[16:17], s[0:1], 56
  v_lshrrev_b32 v1, 6, v0
  v_and_b32 v0, 63, v0
  v_readfirstlane_b32 s3, v1
  s_and_b32 s{sT0}, s2, 7
  s_lshr_b32 s{sROT}, s2, 3
  s_and_b32 s{sT1}, s{sROT}, 1
  s_lshl_b32 s{sT1}, s{sT1}, 3
  s_add_u32 s{sHKV}, s{sT0}, s{sT1}
  s_lshr_b32 s{sT1}, s{sROT}, 1
  s_lshr_b32 s{sB}, s{sT1}, 2
  s_and_b32 s{sS}, s{sT1}, 3
  s_lshl_b32 s{sGRP}, s{sB}, 4
  s_add_u32 s{sGRP}, s{sGRP}, s{sHKV}       ; b*16+hkv
  s_lshl_b32 s{sSLAB}, s{sGRP}, 21
  s_lshl_b32 s{sT1}, s{sS}, 17
  s_add_u32 s{sSLAB}, s{sSLAB}, s{sT1}
  s_add_u32 s{sSLAB}, s{sSLAB}, 0x180000
  s_lshl_b32 s{sSRC}, s{sHKV}, 2
  s_add_u32 s{sSRC}, s{sSRC}, s{sS}         ; hkv*4+s
  s_lshl_b32 s{sP0}, s3, 1
  s_add_u32 s{sP0}, s{sP0}, s{sROT}
  s_add_u32 s{sP1}, s{sP0}, 1
  s_and_b32 s{sP0}, s{sP0}, 31
  s_and_b32 s{sP1}, s{sP1}, 31
  s_lshl_b32 s{sP0}, s{sP0}, 12
  s_lshl_b32 s{sP1}, s{sP1}, 12
  s_cmp_ge_u32 s3, 9
  s_cbranch_scc1 L_noq
""")
    a(f"""
  v_lshrrev_b32 v2, 3, v0                   ; cls
  v_and_b32 v5, 7, v0                       ; c8
  v_mul_u32_u24 v3, {72*8192}, v2
  v_lshl_add_u32 v3, v5, 4, v3
  v_mul_u32_u24 v4, 144, v2                 ; x voffset
  s_lshl_b32 s{sT0}, s{sHKV}, 9
  s_lshl_b32 s{sT1}, s{sS}, 7
  s_add_u32 s{sT0}, s{sT0}, s{sT1}
  s_mul_i32 s{sT1}, s{sB}, 1152
  s_lshl_b32 s{sT2}, s3, 4
  s_add_u32 s{sT1}, s{sT1}, s{sT2}          ; x soffset = b*1152 + w*16
  s_lshl_b32 s{sT2}, s3, 16                 ; w*8 rows * 8192
  s_waitcnt lgkmcnt(0)
  s_add_u32 s{rWQ}, s{sWQ}, s{sT0}
  s_addc_u32 s{rWQ+1}, s{sWQ+1}, 0
  s_and_b32 s{rWQ+1}, s{rWQ+1}, 0xffff
  s_sub_u32 s{rWQ+2}, {576*8192}, s{sT0}
  s_mov_b32 s{rWQ+3}, 0x20000
  s_mov_b32 s{rX}, s{sX}
  s_and_b32 s{rX+1}, s{sX+1}, 0xffff
  s_mov_b32 s{rX+2}, 4608
  s_mov_b32 s{rX+3}, 0x20000
""")
    for g in range(8):
        a(f"  buffer_load_dwordx4 {vr(vW+4*g,4)}, v3, {srd(rWQ)}, s{sT2} offen {wflag}")
        if g < 7: a(f"  s_add_u32 s{sT2}, s{sT2}, 8192")
        if g == 0: a(f"  buffer_load_dwordx4 {vr(vXD,4)}, v4, {srd(rX)}, s{sT1} offen")
    a("  s_branch L_common")
    def build_k_srd():
        a(f"""  s_add_u32 s{rK}, s{sK}, s{sSLAB}
  s_addc_u32 s{rK+1}, s{sK+1}, 0
  s_and_b32 s{rK+1}, s{rK+1}, 0xffff
  s_mov_b32 s{rK+2}, 0x20000
  s_mov_b32 s{rK+3}, 0x20000""")
    def build_v_srd():
        a(f"""  s_add_u32 s{rV}, s{sV}, s{sSLAB}
  s_addc_u32 s{rV+1}, s{sV+1}, 0
  s_and_b32 s{rV+1}, s{rV+1}, 0xffff
  s_mov_b32 s{rV+2}, 0x20000
  s_mov_b32 s{rV+3}, 0x20000""")
    def k_off():
        a(f"""  v_lshrrev_b32 v4, 4, v{vL}                ; kgl
  v_and_b32 v5, 15, v{vL}
  v_lshlrev_b32 v6, 2, v4
  v_xor_b32 v5, v5, v6                      ; (l&15) ^ 4kgl
  v_lshlrev_b32 v5, 4, v5
  v_lshl_add_u32 v4, v4, 8, v5              ; voff_0
  v_xor_b32 v5, 16, v4
  v_xor_b32 v6, 32, v4
  v_xor_b32 v7, 48, v4""")
    def k_dma():
        a(f"""  s_lshl_b32 s{sT0}, s3, 13
  s_mov_b32 m0, s{sT0}
  s_add_u32 s{sT0}, s{sT0}, 4096""")
        for t in range(2):
            if t == 1:
                a(f"  s_mov_b32 m0, s{sT0}")
                a("  s_nop 0")
            for i in range(4):
                a(f"  buffer_load_dwordx4 v{4+i}, {srd(rK)}, s{sP0+t} offen offset:{i*1024} {stream} lds")
    def v_loads():
        a(f"  v_lshlrev_b32 v4, 4, v{vL}")
        for t in range(2):
            for r in range(4):
                a(f"  buffer_load_dwordx4 {vr(vV+16*t+4*r,4)}, v4, {srd(rV)}, s{sP0+t} offen offset:{r*1024} {stream}")
    a("L_noq:")
    k_off()
    a("  s_waitcnt lgkmcnt(0)")
    build_k_srd()
    k_dma()
    build_v_srd()
    a(f"  s_cmp_gt_u32 s3, {vpre}")
    a("  s_cbranch_scc1 L_novpre")
    v_loads()
    a("L_novpre:")
    a(f"""  s_cmp_lg_u32 s3, 9
  s_cbranch_scc1 L_common2
  v_mov_b32 v2, 0
  v_mov_b32 v4, {L_FLAG}
  ds_write_b32 v4, v2
  s_branch L_common2
""")
    a("L_common:")
    build_k_srd()
    build_v_srd()
    a("L_common2:")
    a(f"""  s_lshl_b32 s{sT0}, s{sB}, 8
  s_load_dword s{sEP}, s[{sWS}:{sWS+1}], s{sT0}
  s_mov_b32 s{rWS}, s{sWS}
  s_and_b32 s{rWS+1}, s{sWS+1}, 0xffff
  s_mov_b32 s{rWS+2}, {W_SIZE}
  s_mov_b32 s{rWS+3}, 0x20000
  s_mul_i32 s{sT0}, s{sSRC}, {64*1152}
  s_add_u32 s{rWO}, s{sWO}, s{sT0}
  s_addc_u32 s{rWO+1}, s{sWO+1}, 0
  s_and_b32 s{rWO+1}, s{rWO+1}, 0xffff
  s_mov_b32 s{rWO+2}, {64*1152}
  s_mov_b32 s{rWO+3}, 0x20000
  s_mov_b32 s{rO}, s{sOUT}
  s_and_b32 s{rO+1}, s{sOUT+1}, 0xffff
  s_mov_b32 s{rO+2}, 4608
  s_mov_b32 s{rO+3}, 0x20000
  s_mov_b32 s{sSC}, {f32hex(SCALE)}
  s_movk_i32 s{sFF}, 0xff
  v_and_b32 v4, 1, v{vL}
  v_cmp_eq_u32 vcc, 1, v4
  v_mov_b32 v5, 0x0c0c0100
  v_mov_b32 v6, 0x01000c0c
  v_cndmask_b32 v5, v5, v6, vcc             ; e=0 pattern
  v_mov_b32 v6, 0x0c0c0302
  v_mov_b32 v7, 0x03020c0c
  v_cndmask_b32 v6, v6, v7, vcc             ; e=1 pattern
  v_bfe_u32 v4, v{vL}, 1, 2                 ; (l&7)>>1
  v_mov_b32 v7, 0x0c0c0c0c
""")
    for i in range(4):
        a(f"""  v_cmp_eq_u32 vcc, {i}, v4
  s_nop 1
  v_cndmask_b32 v{vSEL+2*i}, v7, v5, vcc
  v_cndmask_b32 v{vSEL+2*i+1}, v7, v6, vcc""")
    def diag_mfma(src_pairs, data, acc, waits, tmpA=(vQF, vQF+4)):
        for g in range(8):
            A = tmpA[g & 1]
            for i in range(4):
                a(f"  v_perm_b32 v{A+i}, v{src_pairs+(g>>1)}, v{src_pairs+(g>>1)}, v{vSEL+2*i+(g&1)}")
            w = waits(g)
            a(f"  {w}" if w else "  s_nop 0")
            a("  s_nop 0")
            a(f"  v_mfma_f32_16x16x32_bf16 {vr(acc,4)}, {vr(A,4)}, {vr(data(g),4)}, {vr(acc,4)}")
    a(f"""  s_cmp_ge_u32 s3, 9
  s_cbranch_scc1 L_bb
  v_mov_b32 v{vACC}, 0
  v_mov_b32 v{vACC+1}, 0
  v_mov_b32 v{vACC+2}, 0
  v_mov_b32 v{vACC+3}, 0
  s_waitcnt vmcnt(7)
""")
    diag_mfma(vXD, lambda g: vW+4*g, vACC, lambda g: f"s_waitcnt vmcnt({7-g})")
    a(f"""  v_lshlrev_b32 v4, 4, v{vL}
  s_lshl_b32 s{sT0}, s3, 10
  s_add_u32 s{sT0}, s{sT0}, {L_QP}
  v_add_u32 v4, s{sT0}, v4
  s_nop 7
  ds_write_b128 v4, {vr(vACC,4)}
L_bb:
  s_waitcnt lgkmcnt(0)
  s_add_u32 s{sEP}, s{sEP}, 1
  s_and_b32 s{sTAG}, s{sEP}, 0xff
  v_mov_b32 v{vTAG}, s{sTAG}
  s_barrier
""")
    stamp('bb')
    a(f"""  s_cmp_lg_u32 s3, 15
  s_cbranch_scc1 L_noex
  s_setprio 3
  v_lshrrev_b32 v4, 3, v{vL}
  v_bfe_u32 v5, v{vL}, 2, 1
  v_lshl_add_u32 v4, v5, 4, v4              ; lane' = (l>>3) + 16*((l>>2)&1)
  v_lshlrev_b32 v4, 4, v4
  v_and_b32 v5, 3, v{vL}
  v_lshl_add_u32 v4, v5, 2, v4
  v_add_u32 v4, {L_QP}, v4
""")
    for w in range(9):
        a(f"  ds_read_b32 v{vQF+2*w}, v4 offset:{w*1024}")
        a(f"  ds_read_b32 v{vQF+2*w+1}, v4 offset:{w*1024+640}")
        if w == 6: a("  s_waitcnt lgkmcnt(0)")
    a("  s_waitcnt lgkmcnt(0)")
    def treesum(regs):
        while len(regs) > 1:
            nxt = []
            for i in range(0, len(regs)-1, 2):
                a(f"  v_add_f32 v{regs[i]}, v{regs[i]}, v{regs[i+1]}")
                nxt.append(regs[i])
            if len(regs) & 1: nxt.append(regs[-1])
            regs = nxt
        return regs[0]
    q = treesum([vQF+i for i in range(18)])
    a(f"""  v_cvt_pk_bf16_f32 v6, v{q}, v{q}
  v_lshlrev_b32 v4, 2, v{vL}
  s_lshl_b32 s{sT0}, s{sGRP}, 10
  s_add_u32 s{sT0}, s{sT0}, {W_X0}
  s_lshl_b32 s{sT1}, s{sS}, 8
  s_add_u32 s{sT1}, s{sT1}, s{sT0}
  v_and_b32 v6, 0xffff0000, v6
  v_or_b32 v6, s{sTAG}, v6
  buffer_store_dword v6, v4, {srd(rWS)}, s{sT1} offen {st_flags}
  v_lshlrev_b32 v4, 4, v{vL}
""")
    pollloop('L_poll0', lambda: a(f"  buffer_load_dwordx4 {vr(vQF,4)}, v4, {srd(rWS)}, s{sT0} offen {ld_flags}"),
             [vQF, vQF+1, vQF+2, vQF+3], vQF+4)
    a(f"""  s_mov_b32 s{sT2}, 0x07060302
  v_perm_b32 v{vQF}, v{vQF+1}, v{vQF}, s{sT2}
  v_perm_b32 v{vQF+1}, v{vQF+3}, v{vQF+2}, s{sT2}
  v_lshlrev_b32 v4, 3, v{vL}
  v_add_u32 v4, {L_QF}, v4
  ds_write_b64 v4, {vr(vQF,2)}
  v_mov_b32 v5, 1
  v_mov_b32 v4, {L_FLAG}
  s_waitcnt lgkmcnt(0)
  ds_write_b32 v4, v5
  s_setprio 0
L_noex:
""")
    stamp('exdone')
    a("  s_cmp_ge_u32 s3, 9")
    a("  s_cbranch_scc1 L_kdone")
    k_off()
    k_dma()
    a("L_kdone:")
    a(f"""  s_cmp_lt_u32 s3, 9
  s_cbranch_scc1 L_dov
  s_cmp_le_u32 s3, {vpre}
  s_cbranch_scc1 L_vdone
L_dov:""")
    v_loads()
    a("L_vdone:")
    stamp('vissued')
    a(f"""  v_mov_b32 v4, {L_FLAG}
  s_mov_b32 s{sCNT}, 0
L_spin:
  ds_read_b32 v5, v4
  s_add_u32 s{sCNT}, s{sCNT}, 1
  s_waitcnt lgkmcnt(0)
  v_readfirstlane_b32 s{sT0}, v5
  s_cmp_eq_u32 s{sT0}, 1
  s_cbranch_scc1 L_gotq
  s_sleep 4
  s_cmp_lt_u32 s{sCNT}, {spin_limit*4}
  s_cbranch_scc1 L_spin
L_gotq:
""")
    stamp('gotq')
    a(f"""  v_bfe_u32 v4, v{vL}, 3, 1                 ; h
  v_lshrrev_b32 v5, 4, v{vL}                ; kg
  v_lshlrev_b32 v4, 8, v4
  v_lshl_add_u32 v4, v5, 4, v4
  v_add_u32 v4, {L_QF}, v4
""")
    for st in range(4):
        a(f"  ds_read_b128 {vr(vQF+4*st,4)}, v4 offset:{st*64}")
    a(f"""  v_and_b32 v6, 15, v{vL}                   ; m
  v_xor_b32 v5, v5, v6                      ; kg ^ m
  v_lshlrev_b32 v5, 4, v5
  v_and_b32 v7, 3, v6
  v_lshlrev_b32 v7, 2, v7
  v_lshrrev_b32 v6, 2, v6
  v_add_u32 v6, v6, v7                      ; rho
  v_lshl_add_u32 v4, v6, 8, v5
  s_lshl_b32 s{sT0}, s3, 13
  v_add_u32 v4, s{sT0}, v4
  v_xor_b32 v5, 64, v4
  v_xor_b32 v6, 128, v4
  v_xor_b32 v7, 192, v4
""")
    for i in range(8): a(f"  v_mov_b32 v{vS+i}, 0")
    a("  s_waitcnt vmcnt(8)")
    stamp('karr')
    for t in range(2):
        for st in range(4):
            a(f"  ds_read_b128 {vr(vKF+4*st,4)}, v{4+st} offset:{t*4096}")
        for st in range(4):
            a(f"  s_waitcnt lgkmcnt({3-st})")
            a(f"  v_mfma_f32_16x16x32_bf16 {vr(vS+4*t,4)}, {vr(vKF+4*st,4)}, {vr(vQF+4*st,4)}, {vr(vS+4*t,4)}")
    vM, vLs, vP = vQF, vQF+1, vQF+2
    vT = vQF+6
    a(f"""  s_nop 7
  v_max3_f32 v{vM}, v{vS}, v{vS+1}, v{vS+2}
  v_max3_f32 v{vT}, v{vS+3}, v{vS+4}, v{vS+5}
  v_max3_f32 v{vM}, v{vM}, v{vS+6}, v{vS+7}
  v_max_f32 v{vM}, v{vM}, v{vT}
  v_mov_b32 v{vT}, v{vM}
  s_nop 1
  v_permlane16_swap_b32 v{vM}, v{vT}
  s_nop 1
  v_max_f32 v{vM}, v{vM}, v{vT}
  v_mov_b32 v{vT}, v{vM}
  s_nop 1
  v_permlane32_swap_b32 v{vM}, v{vT}
  s_nop 1
  v_max_f32 v{vM}, v{vM}, v{vT}
  v_mul_f32 v{vM}, s{sSC}, v{vM}
  v_bfe_u32 v4, v{vL}, 3, 1
  v_lshlrev_b32 v4, 2, v4
  s_lshl_b32 s{sT0}, s3, 3
  s_add_u32 s{sT0}, s{sT0}, {L_MX}
  v_add_u32 v4, s{sT0}, v4
  s_mov_b32 exec_lo, 0x101
  s_mov_b32 exec_hi, 0
  ds_write_b32 v4, v{vM}
  s_mov_b64 exec, -1
""")
    for i in range(8):
        a(f"  v_fma_f32 v{vS+i}, v{vS+i}, s{sSC}, -v{vM}")
    for i in range(8):
        a(f"  v_exp_f32 v{vS+i}, v{vS+i}")
    a("  s_nop 0")
    a(f"""  v_add_f32 v{vLs}, v{vS}, v{vS+1}
  v_add_f32 v{vT}, v{vS+2}, v{vS+3}
  v_add_f32 v{vT+1}, v{vS+4}, v{vS+5}
  v_add_f32 v{vT+2}, v{vS+6}, v{vS+7}
  v_add_f32 v{vLs}, v{vLs}, v{vT}
  v_add_f32 v{vT+1}, v{vT+1}, v{vT+2}
  v_add_f32 v{vLs}, v{vLs}, v{vT+1}
  v_cvt_pk_bf16_f32 v{vP}, v{vS}, v{vS+1}
  v_cvt_pk_bf16_f32 v{vP+1}, v{vS+2}, v{vS+3}
  v_cvt_pk_bf16_f32 v{vP+2}, v{vS+4}, v{vS+5}
  v_cvt_pk_bf16_f32 v{vP+3}, v{vS+6}, v{vS+7}
  v_mov_b32 v{vT}, v{vLs}
  s_nop 1
  v_permlane16_swap_b32 v{vLs}, v{vT}
  s_nop 1
  v_add_f32 v{vLs}, v{vLs}, v{vT}
  v_mov_b32 v{vT}, v{vLs}
  s_nop 1
  v_permlane32_swap_b32 v{vLs}, v{vT}
  s_nop 1
  v_add_f32 v{vLs}, v{vLs}, v{vT}
  s_waitcnt lgkmcnt(0)
  s_barrier
""")
    stamp('bmax')
    a(f"""  s_cmp_lt_u32 s3, {wo_first}
  s_cbranch_scc1 L_nowo
  v_lshrrev_b32 v4, 3, v{vL}
  v_mul_u32_u24 v4, 9216, v4
  v_and_b32 v5, 7, v{vL}
  v_lshl_add_u32 v4, v5, 4, v4
  s_sub_u32 s{sT0}, s3, {wo_first}
  s_lshl_b32 s{sT0}, s{sT0}, 7
  s_add_u32 s{sT1}, s{sT0}, 4608
""")
    for g in range(8):
        a(f"  buffer_load_dwordx4 {vr(vW+4*g,4)}, v4, {srd(rWO)}, s{sT0 if g < 4 else sT1} offen offset:{(g&3)*1152} {wflag}")
    a("L_nowo:")
    stamp('woissued')
    vF, vMG = vQF+6, vQF+7
    a(f"""  v_and_b32 v4, 15, v{vL}
  v_lshlrev_b32 v4, 3, v4
  v_lshrrev_b32 v5, 5, v{vL}                ; h' = l>>5
  v_lshl_add_u32 v4, v5, 2, v4
  v_add_u32 v4, {L_MX}, v4
  ds_read_b32 v{vMG}, v4
  s_lshl_b32 s{sT0}, s3, 3
  s_add_u32 s{sT0}, s{sT0}, {L_MX}
  v_lshlrev_b32 v5, 2, v5
  v_add_u32 v5, s{sT0}, v5
  ds_read_b32 v{vF}, v5                     ; own m_w[h']
  v_mov_b32 v{vACC}, 0
  v_mov_b32 v{vACC+1}, 0
  v_mov_b32 v{vACC+2}, 0
  v_mov_b32 v{vACC+3}, 0
  s_waitcnt lgkmcnt(0)
  v_max_f32_dpp v{vMG}, v{vMG}, v{vMG} row_ror:8 row_mask:0xf bank_mask:0xf
  s_nop 1
  v_max_f32_dpp v{vMG}, v{vMG}, v{vMG} row_ror:4 row_mask:0xf bank_mask:0xf
  s_nop 1
  v_max_f32_dpp v{vMG}, v{vMG}, v{vMG} row_ror:2 row_mask:0xf bank_mask:0xf
  s_nop 1
  v_max_f32_dpp v{vMG}, v{vMG}, v{vMG} row_ror:1 row_mask:0xf bank_mask:0xf
  s_nop 0
  v_sub_f32 v{vF}, v{vF}, v{vMG}
  v_exp_f32 v{vF}, v{vF}
  s_nop 0
  v_mul_f32 v{vLs}, v{vLs}, v{vF}
  v_lshrrev_b32 v5, 5, v{vL}
  v_lshlrev_b32 v5, 2, v5
  s_add_u32 s{sT0}, s{sT0}, {L_LL-L_MX}
  v_add_u32 v5, s{sT0}, v5
  s_mov_b32 exec_lo, 1
  s_mov_b32 exec_hi, 0x100
  ds_write_b32 v5, v{vLs}
  s_mov_b64 exec, -1
  s_cmp_lt_u32 s3, {wo_first}
  s_cbranch_scc1 L_pv0
""")
    tA = (vQF+8, vQF+12)
    diag_mfma(vP, lambda g: vV+4*g, vACC, lambda g: f"s_waitcnt vmcnt({15-g})", tA)
    a("  s_branch L_pvd")
    a("L_pv0:")
    diag_mfma(vP, lambda g: vV+4*g, vACC, lambda g: f"s_waitcnt vmcnt({7-g})", tA)
    a("L_pvd:")
    stamp('pvdone')
    a(f"""  v_lshlrev_b32 v4, 4, v{vL}
  s_lshl_b32 s{sT0}, s3, 13
  v_add_u32 v4, s{sT0}, v4
  s_nop 5
  v_mul_f32 v{vACC}, v{vACC}, v{vF}
  v_mul_f32 v{vACC+1}, v{vACC+1}, v{vF}
  v_mul_f32 v{vACC+2}, v{vACC+2}, v{vF}
  v_mul_f32 v{vACC+3}, v{vACC+3}, v{vF}
  ds_write_b128 v4, {vr(vACC,4)}
  s_waitcnt lgkmcnt(0)
  s_barrier
""")
    stamp('bd')
    G = vKF
    a(f"""  s_cmp_ge_u32 s3, 4
  s_cbranch_scc1 L_nopub1
  v_lshrrev_b32 v4, 3, v{vL}
  v_bfe_u32 v5, v{vL}, 2, 1
  v_lshl_add_u32 v4, v5, 4, v4               ; (l>>3) + 16*b4
  s_lshr_b32 s{sT0}, s3, 1                   ; h
  s_and_b32 s{sT1}, s3, 1
  s_lshl_b32 s{sT2}, s{sT0}, 5
  s_lshl_b32 s{sT1}, s{sT1}, 3
  s_add_u32 s{sT1}, s{sT1}, s{sT2}           ; 32h + 8(s'&1)
  v_add_u32 v4, s{sT1}, v4                   ; lane'
  v_and_b32 v5, 3, v{vL}
  v_lshlrev_b32 v5, 2, v5
  v_lshl_add_u32 v4, v4, 4, v5               ; lane'*16 + r*4
  v_add_u32 v5, 0x10000, v4
""")
    for w in range(16):
        a(f"  ds_read_b32 v{vV+w}, v{4 if w < 8 else 5} offset:{(w&7)*8192}")
        if w == 13: pass
    a(f"""  v_and_b32 v6, 15, v{vL}
  v_lshlrev_b32 v6, 3, v6
  s_lshl_b32 s{sT1}, s{sT0}, 2
  s_add_u32 s{sT1}, s{sT1}, {L_LL}
  v_add_u32 v6, s{sT1}, v6
  s_waitcnt lgkmcnt(8)
  ds_read_b32 v7, v6                         ; l_w[h] for w = l&15
  v_readlane_b32 s{sT1}, v{vMG}, s{sT2}
  s_lshl_b32 s{sT0}, s{sGRP}, 13
  s_add_u32 s{sT0}, s{sT0}, {W_X1}
  s_lshl_b32 s{sT3}, s3, 11                  ; dst*2048
  s_add_u32 s{sT0}, s{sT0}, s{sT3}
  s_lshl_b32 s{sT3}, s{sS}, 9                ; src*512
  s_add_u32 s{sT0}, s{sT0}, s{sT3}
  v_and_b32 v5, 1, v{vL}
  v_cmp_eq_u32 vcc, 1, v5
  v_lshlrev_b32 v4, 3, v{vL}
  s_waitcnt lgkmcnt(0)
  v_add_f32_dpp v7, v7, v7 row_ror:8 row_mask:0xf bank_mask:0xf
""")
    a(f"  v_add_f32 v{vV}, v{vV}, v{vV+1}")
    a(f"  v_add_f32 v{vV+2}, v{vV+2}, v{vV+3}")
    a("  v_add_f32_dpp v7, v7, v7 row_ror:4 row_mask:0xf bank_mask:0xf")
    a(f"  v_add_f32 v{vV+4}, v{vV+4}, v{vV+5}")
    a(f"  v_add_f32 v{vV+6}, v{vV+6}, v{vV+7}")
    a("  v_add_f32_dpp v7, v7, v7 row_ror:2 row_mask:0xf bank_mask:0xf")
    a(f"  v_add_f32 v{vV+8}, v{vV+8}, v{vV+9}")
    a(f"  v_add_f32 v{vV+10}, v{vV+10}, v{vV+11}")
    a("  v_add_f32_dpp v7, v7, v7 row_ror:1 row_mask:0xf bank_mask:0xf")
    a(f"  v_add_f32 v{vV+12}, v{vV+12}, v{vV+13}")
    a(f"  v_add_f32 v{vV+14}, v{vV+14}, v{vV+15}")
    o = treesum([vV+2*i for i in range(8)])
    a(f"""  v_mov_b32 v6, s{sT1}
  v_cndmask_b32 v6, v6, v7, vcc
  v_bfi_b32 v{G}, s{sFF}, v{vTAG}, v{o}
  v_bfi_b32 v{G+1}, s{sFF}, v{vTAG}, v6
  buffer_store_dwordx2 {vr(G,2)}, v4, {srd(rWS)}, s{sT0} offen {st_flags}
L_nopub1:
  s_cmp_lg_u32 s3, 4
  s_cbranch_scc1 L_nocons1
  s_lshl_b32 s{sT0}, s{sGRP}, 13
  s_add_u32 s{sT0}, s{sT0}, {W_X1}
  s_lshl_b32 s{sT1}, s{sS}, 11
  s_add_u32 s{sT0}, s{sT0}, s{sT1}
  v_lshlrev_b32 v4, 3, v{vL}
""")
    def l1loads():
        for src in range(4):
            a(f"  buffer_load_dwordx2 {vr(G+2*src,2)}, v4, {srd(rWS)}, s{sT0} offen offset:{src*512} {ld_flags}")
    pollloop('L_poll1', l1loads, [G+i for i in range(8)], G+8)
    for src in range(4):
        a(f"  v_mov_b32_dpp v{G+8+src}, v{G+2*src+1} quad_perm:[0,0,2,2] row_mask:0xf bank_mask:0xf")
        a(f"  v_mov_b32_dpp v{G+12+src}, v{G+2*src+1} quad_perm:[1,1,3,3] row_mask:0xf bank_mask:0xf")
    a(f"""  v_max3_f32 v5, v{G+8}, v{G+9}, v{G+10}
  v_max_f32 v5, v5, v{G+11}
""")
    for src in range(4):
        a(f"  v_sub_f32 v{G+8+src}, v{G+8+src}, v5")
    for src in range(4):
        a(f"  v_exp_f32 v{G+8+src}, v{G+8+src}")
    a(f"""  s_nop 0
  v_mul_f32 v6, v{G+8}, v{G+12}
  v_mul_f32 v7, v{G+8}, v{G}
  v_fmac_f32 v6, v{G+9}, v{G+13}
  v_fmac_f32 v7, v{G+9}, v{G+2}
  v_fmac_f32 v6, v{G+10}, v{G+14}
  v_fmac_f32 v7, v{G+10}, v{G+4}
  v_fmac_f32 v6, v{G+11}, v{G+15}
  v_fmac_f32 v7, v{G+11}, v{G+6}
  v_rcp_f32 v6, v6
  v_lshlrev_b32 v4, 1, v{vL}
  v_add_u32 v4, {L_OT}, v4
  v_mul_f32 v7, v7, v6
  v_cvt_pk_bf16_f32 v7, v7, v7
  ds_write_b16 v4, v7
L_nocons1:
  s_waitcnt lgkmcnt(0)
  s_barrier
""")
    stamp('be')
    a(f"""  s_cmp_lt_u32 s3, {wo_first}
  s_cbranch_scc1 L_noy
  v_lshrrev_b32 v4, 3, v{vL}
  v_lshlrev_b32 v4, 4, v4
  v_add_u32 v4, {L_OT}, v4
  ds_read_b128 {vr(vXD,4)}, v4
  v_mov_b32 v{vACC}, 0
  v_mov_b32 v{vACC+1}, 0
  v_mov_b32 v{vACC+2}, 0
  v_mov_b32 v{vACC+3}, 0
  v_bfe_u32 v4, v{vL}, 1, 2
  v_lshlrev_b32 v4, 12, v4
  v_and_b32 v5, 1, v{vL}
  v_lshl_add_u32 v4, v5, 5, v4
  v_bfe_u32 v5, v{vL}, 4, 1
  v_lshl_add_u32 v4, v5, 4, v4
  s_mul_i32 s{sT0}, s{sB}, {36*4096}
  s_add_u32 s{sT0}, s{sT0}, {W_X2}
  s_sub_u32 s{sT1}, s3, {wo_first}
  s_lshl_b32 s{sT1}, s{sT1}, 14
  s_add_u32 s{sT0}, s{sT0}, s{sT1}
  s_lshl_b32 s{sT1}, s{sSRC}, 6
  s_add_u32 s{sT0}, s{sT0}, s{sT1}
  s_waitcnt vmcnt(0) lgkmcnt(0)
""")
    stamp('woarr')
    diag_mfma(vXD, lambda g: vW+4*g, vACC, lambda g: None, (vQF, vQF+4))
    Y = vKF
    a("  s_nop 7")
    for r in range(4):
        a(f"  v_permlane32_swap_b32 v{vACC+r}, v{vQF+8+r}")
    a("  s_nop 1")
    for r in range(4):
        a(f"  v_add_f32_dpp v{Y+r}, v{vQF+8+r}, v{vACC+r} row_ror:8 row_mask:0xf bank_mask:0xf")
    for r in range(4):
        a(f"  v_bfi_b32 v{Y+r}, s{sFF}, v{vTAG}, v{Y+r}")
    a(f"""  s_mov_b32 exec_lo, 0x00ff00ff
  s_mov_b32 exec_hi, 0
  buffer_store_dwordx4 {vr(Y,4)}, v4, {srd(rWS)}, s{sT0} offen {st_flags}
  s_mov_b64 exec, -1
  s_branch L_fin
L_noy:
  s_cmp_lg_u32 s3, 0
  s_cbranch_scc1 L_fin
  s_cmp_ge_u32 s{sSRC}, 36
  s_cbranch_scc1 L_fin
  s_mul_i32 s{sT0}, s{sB}, {36*4096}
  s_add_u32 s{sT0}, s{sT0}, {W_X2}
  s_lshl_b32 s{sT2}, s{sSRC}, 12
  s_add_u32 s{sT0}, s{sT0}, s{sT2}
  v_lshlrev_b32 v4, 4, v{vL}
""")
    def l2loads():
        for i in range(4):
            a(f"  buffer_load_dwordx4 {vr(G+4*i,4)}, v4, {srd(rWS)}, s{sT0} offen offset:{i*1024} {ld_flags}")
    pollloop('L_poll2', l2loads, [G+i for i in range(16)], vQF)
    for r in range(4):
        a(f"  v_add_f32 v{G+r}, v{G+r}, v{G+4+r}")
        a(f"  v_add_f32 v{G+8+r}, v{G+8+r}, v{G+12+r}")
    for r in range(4):
        a(f"  v_add_f32 v{G+r}, v{G+r}, v{G+8+r}")
    a("  s_nop 0")
    for rot in (4, 8):
        for r in range(4):
            a(f"  v_add_f32_dpp v{G+r}, v{G+r}, v{G+r} row_ror:{rot} row_mask:0xf bank_mask:0xf")
    for swp in ('v_permlane16_swap_b32', 'v_permlane32_swap_b32'):
        for r in range(4):
            a(f"  v_mov_b32 v{G+4+r}, v{G+r}")
        a("  s_nop 0")
        for r in range(4):
            a(f"  {swp} v{G+r}, v{G+4+r}")
        a("  s_nop 0")
        for r in range(4):
            a(f"  v_add_f32 v{G+r}, v{G+r}, v{G+4+r}")
    a(f"""  v_cvt_pk_bf16_f32 v6, v{G}, v{G+1}
  v_cvt_pk_bf16_f32 v7, v{G+2}, v{G+3}
  v_lshlrev_b32 v4, 3, v{vL}
  s_mul_i32 s{sT0}, s{sB}, 1152
  s_lshl_b32 s{sT2}, s{sSRC}, 5
  s_add_u32 s{sT0}, s{sT0}, s{sT2}
  s_mov_b32 exec_lo, 0xf
  s_mov_b32 exec_hi, 0
  buffer_store_dwordx2 v[6:7], v4, {srd(rO)}, s{sT0} offen
  s_cmp_lg_u32 s{sSRC}, 0
  s_cbranch_scc1 L_fin0
  s_mov_b32 exec_lo, 1
  v_mov_b32 v5, s{sEP}
  v_mov_b32 v4, 0
  s_lshl_b32 s{sT0}, s{sB}, 8
  buffer_store_dword v5, v4, {srd(rWS)}, s{sT0} offen
L_fin0:
  s_mov_b64 exec, -1
L_fin:
""")
    if stamps and dbgmax is not None:
        stamp('fin')
        a(f"""  s_waitcnt vmcnt(0)
  s_memrealtime s[{sST+14}:{sST+15}]
  s_cmp_lg_u32 s3, {dbgmax}
  s_cbranch_scc1 L_end
  s_load_dwordx2 s[{sT2}:{sT2+1}], s[0:1], 48
  s_waitcnt lgkmcnt(0)
  s_mov_b64 exec, 1
  v_mov_b32 v4, 0
  s_not_b32 s{sST}, s{sST}
""")
        for i in range(8):
            a(f"  v_mov_b32 v8, s{sST+2*i}")
            a(f"  global_atomic_umax v4, v8, s[{sT2}:{sT2+1}] offset:{4*i}")
            a("  s_nop 1")
        for i in range(1, 8):
            a(f"  s_not_b32 s{sST+2*i}, s{sST+2*i}")
            a(f"  v_mov_b32 v8, s{sST+2*i}")
            a(f"  global_atomic_umax v4, v8, s[{sT2}:{sT2+1}] offset:{32+4*i}")
            a("  s_nop 1")
    elif stamps:
        stamp('fin')
        a(f"""  s_waitcnt vmcnt(0)
  s_memrealtime s[{sST+14}:{sST+15}]
  s_lshl_b32 s{sT0}, s2, 4
  s_add_u32 s{sT0}, s{sT0}, s3
  s_lshl_b32 s{sT0}, s{sT0}, 6
  s_add_u32 s{sT2}, s{sWS}, s{sT0}
  s_addc_u32 s{sT3}, s{sWS+1}, 0
  s_add_u32 s{sT2}, s{sT2}, {W_STAMP}
  s_addc_u32 s{sT3}, s{sT3}, 0
  s_waitcnt lgkmcnt(0)
  s_mov_b64 exec, 1
  v_mov_b32 v4, 0
""")
        for i in range(4):
            for k in range(4):
                a(f"  v_mov_b32 v{8+k}, s{sST+4*i+k}")
            a(f"  global_store_dwordx4 v4, v[8:11], s[{sT2}:{sT2+1}] offset:{16*i}")
            a("  s_nop 1")
    a("L_end:")
    a("  s_endpgm")
    a(kernel_desc(NAME, 128, 96 if stamps else 66, accum=128))
    open(fname, 'w').write(a.text())

ST_A = ['start','bb','gotq','bmax','pvdone','bd','be']
ST_B = ['start','vissued','karr','woissued','woarr','be','fin']
if __name__ == '__main__':
    gen('k2.s')
    gen('k2_sta.s', stamps=ST_A)
    gen('k2_stb.s', stamps=ST_B)
    gen('k2_dbg.s', stamps=ST_A, dbgmax=0)
```

```python
import sys, math, struct
from asmlib import *

L_K    = 0
L_U    = 131072
L_QP   = L_U
L_OP   = L_U
L_QF   = L_U + 9*2048
L_FLAG = L_QF + 512
L_QCNT = L_FLAG + 4
L_PCNT = L_FLAG + 8
L_FLG2 = L_FLAG + 12
L_WCNT = L_FLAG + 16
L_PUB  = L_FLAG + 20
L_YCNT = L_FLAG + 24
L_SAME = L_FLAG + 28
L_MX   = L_FLAG + 64
L_LL   = L_MX + 128
L_OT   = L_LL + 128
L_END  = L_OT + 128
LDS_BYTES = (L_END + 255)//256*256
W_EPOCH = 0
W_XID = 0x8000
W_X0 = 0x100000
W_X0B = 0x140000
W_X1 = 0x180000
W_X2 = 0x200000
W_SIZE = 0x300000
W_STAMP = 256 << 20
SCALE = (128 ** -0.5) * math.log2(math.e)
def f32hex(x): return '0x%08x' % struct.unpack('<I', struct.pack('<f', x))[0]

sX, sK, sV, sWQ, sWO, sOUT, sWS = 4, 6, 8, 10, 12, 14, 16
sEP = 18
sTAG = 19
rK, rV, rWQ, rWO, rWS, rX, rO = 20, 24, 28, 32, 36, 40, 44
sHKV, sB, sS, sROT = 48, 49, 50, 51
sT0, sT1, sT2, sT3 = 52, 53, 54, 55
sP0, sP1 = 56, 57
sCNT = 58
sSLAB = 59
sSRC = 60
sGRP = 61
sSC = 62
sFF = 63
sA0, sA1, sA2, sA3 = 64, 65, 66, 67
sVI = 68
sH32 = 69
sXCC = 70
sSAME = 71
sST = 72
def srd(r): return f"s[{r}:{r+3}]"

vL = 0
vTAG = 1
vPA, vPB, vPC, vPD = 2, 3, 124, 125
vSEL = 8
vV = 16
vW = 48
vXD = 80
vX9 = 126
vACC = 84
vQF = 88
vKF = 104
vS = 120
def vr(a, n): return f"v[{a}:{a+n-1}]"

def gen(fname, stamps=None, spin_limit=20000, st_flags='sc1', ld_flags='sc1', stream='nt', wflag='nt',
        prio=True, qkfirst=True, ns0=3, ns1=4, ns2=2, stag0=4, stag1=3, stag2=4, exprio=3, pulse=False, delay0=0, sleep0=0, delay1=0, sleep1=0, delay2=0, sleep2=0, earlypv=True, vprio=1, n1=18, dmafirst=0, ycnt=True, idvec=True, sp_p=1, sp_w=2, sp_y=1, trY=True, mimic=True, LB=8, bar_e=False, bar_y=False, nopre=False, sp_q=4, sp_c=2, woflag=None, rotmode=0, vflag=None, ne=0, outfl='', st1=None, st0=None, xcc=True, dual0=6, padto=None, kpace=0, vpace=0):
    a = Asm()
    hdr = open('standalone__sliding_block_cached__decode.s.ref').read().split('; Override launch')[0]
    a(hdr.rstrip('\n'))
    if stamps: a("; stamps=4096,8")
    a(prologue(NAME, f'; @launch grid=(256,1,1) block=(1024,1,1) lds={LDS_BYTES}'))
    def stamp(name):
        if stamps and name in stamps:
            i = stamps.index(name)
            a(f"  s_memrealtime s[{sST+2*i}:{sST+2*i+1}]")
    def tagcheck(words, tmp):
        n = len(words)//2
        for i in range(n):
            a(f"  v_bitop3_b32 v{tmp+i}, v{words[2*i]}, v{words[2*i+1]}, v{vTAG} bitop3:0x7e")
        regs = [tmp+i for i in range(n)]
        while len(regs) > 1:
            nxt = []
            i = 0
            while i < len(regs):
                if i + 2 < len(regs):
                    a(f"  v_or3_b32 v{regs[i]}, v{regs[i]}, v{regs[i+1]}, v{regs[i+2]}"); nxt.append(regs[i]); i += 3
                elif i + 1 < len(regs):
                    a(f"  v_or_b32 v{regs[i]}, v{regs[i]}, v{regs[i+1]}"); nxt.append(regs[i]); i += 2
                else:
                    nxt.append(regs[i]); i += 1
            regs = nxt
        a(f"  v_and_b32 v{regs[0]}, s{sFF}, v{regs[0]}")
        a(f"  v_cmp_ne_u32 vcc, 0, v{regs[0]}")
    def pollpipe(label, nsets, loads, nloads, words, tmp, dst, stag, resleep=0):
        a(f"  s_mov_b32 s{sCNT}, 0")
        for j in range(nsets):
            loads(j)
            if j + 1 < nsets and stag: a(f"  s_sleep {stag}")
        a(f"{label}:")
        for j in range(nsets):
            a(f"  s_waitcnt vmcnt({nloads*(nsets-1)})")
            tagcheck(words(j), tmp)
            a(f"  s_cbranch_vccz {label}_got{j}")
            if resleep: a(f"  s_sleep {resleep}")
            loads(j)
        a(f"  s_add_u32 s{sCNT}, s{sCNT}, 1")
        a(f"  s_cmp_lt_u32 s{sCNT}, {spin_limit}")
        a(f"  s_cbranch_scc1 {label}")
        a(f"  s_waitcnt vmcnt(0)")
        for j in range(nsets):
            a(f"{label}_got{j}:")
            for src, d in zip(words(j), dst):
                if src != d: a(f"  v_mov_b32 v{d}, v{src}")
            if j + 1 < nsets: a(f"  s_branch {label}_done")
        a(f"{label}_done:")
    def ldsspin(label, addr, value, sleep=2):
        a(f"""  v_mov_b32 v4, {addr}
  s_mov_b32 s{sCNT}, 0
{label}:
  ds_read_b32 v5, v4
  s_add_u32 s{sCNT}, s{sCNT}, 1
  s_waitcnt lgkmcnt(0)
  v_readfirstlane_b32 s{sT0}, v5
  s_cmp_eq_u32 s{sT0}, {value}
  s_cbranch_scc1 {label}_ok
  {('s_sleep ' + str(sleep)) if sleep else ''}
  s_cmp_lt_u32 s{sCNT}, {spin_limit*8}
  s_cbranch_scc1 {label}
{label}_ok:""")
    def ldsinc(addr):
        a(f"""  v_mov_b32 v5, {addr}
  v_mov_b32 v6, 1
  s_mov_b64 exec, 1
  s_waitcnt lgkmcnt(0)
  ds_add_u32 v5, v6
  s_mov_b64 exec, -1""")
    def treesum(regs):
        while len(regs) > 1:
            nxt = []
            for i in range(0, len(regs)-1, 2):
                a(f"  v_add_f32 v{regs[i]}, v{regs[i]}, v{regs[i+1]}")
                nxt.append(regs[i])
            if len(regs) & 1: nxt.append(regs[-1])
            regs = nxt
        return regs[0]
    OTADDR = (f"  v_lshlrev_b32 v4, 1, v{vL}\n  v_add_u32 v4, {L_OT}, v4" if trY else
              f"  v_and_b32 v4, 7, v{vL}\n  v_lshlrev_b32 v4, 4, v4\n  v_lshrrev_b32 v5, 3, v{vL}\n  v_lshl_add_u32 v4, v5, 1, v4\n  v_add_u32 v4, {L_OT}, v4")
    ROTX = ''
    if rotmode == 1:
        ROTX = f"  s_and_b32 s{sT3}, s2, 7\n  s_add_u32 s{sP0}, s{sP0}, s{sT3}\n"
    elif rotmode == 2:
        ROTX = f"  s_and_b32 s{sT3}, s2, 7\n  s_mul_i32 s{sT3}, s{sT3}, 3\n  s_add_u32 s{sP0}, s{sP0}, s{sT3}\n"
    elif rotmode == 3:
        ROTX = f"  s_and_b32 s{sT3}, s{sROT}, 1\n  s_lshl_b32 s{sT3}, s{sT3}, 2\n  s_add_u32 s{sP0}, s{sP0}, s{sT3}\n"
    stamp('start')
    if padto: a("  s_memrealtime s[88:89]")
    a(f"""
  s_cmp_ge_u32 s2, 256
  s_cbranch_scc1 L_end
  s_load_dwordx8 s[4:11], s[0:1], 0
  s_load_dwordx4 s[12:15], s[0:1], 32
  s_load_dwordx2 s[16:17], s[0:1], 56
  v_lshrrev_b32 v1, 6, v0
  v_and_b32 v0, 63, v0
  v_readfirstlane_b32 s3, v1
  s_and_b32 s{sT0}, s2, 7
  s_lshr_b32 s{sROT}, s2, 3
  s_and_b32 s{sT1}, s{sROT}, 1
  s_lshl_b32 s{sT1}, s{sT1}, 3
  s_add_u32 s{sHKV}, s{sT0}, s{sT1}
  s_lshr_b32 s{sT1}, s{sROT}, 1
  s_lshr_b32 s{sB}, s{sT1}, 2
  s_and_b32 s{sS}, s{sT1}, 3
  s_lshl_b32 s{sGRP}, s{sB}, 4
  s_add_u32 s{sGRP}, s{sGRP}, s{sHKV}       ; b*16+hkv
  s_lshl_b32 s{sSLAB}, s{sGRP}, 21
  s_lshl_b32 s{sT1}, s{sS}, 17
  s_add_u32 s{sSLAB}, s{sSLAB}, s{sT1}
  s_add_u32 s{sSLAB}, s{sSLAB}, 0x180000
  s_lshl_b32 s{sSRC}, s{sHKV}, 2
  s_add_u32 s{sSRC}, s{sSRC}, s{sS}         ; hkv*4+s
  s_lshl_b32 s{sP0}, s3, 1
  s_add_u32 s{sP0}, s{sP0}, s{sROT}
{ROTX}  s_add_u32 s{sP1}, s{sP0}, 1
  s_and_b32 s{sP0}, s{sP0}, 31
  s_and_b32 s{sP1}, s{sP1}, 31
  s_lshl_b32 s{sP0}, s{sP0}, 12
  s_lshl_b32 s{sP1}, s{sP1}, 12
  s_cmp_ge_u32 s3, 9
  s_cbranch_scc1 L_noq
""")
    a(f"""
  v_lshrrev_b32 v2, 3, v0                   ; cls
  v_and_b32 v5, 7, v0                       ; c8
  v_mul_u32_u24 v3, {18*8192}, v2
  v_lshl_add_u32 v3, v5, 4, v3
  v_mul_u32_u24 v4, 36, v2                  ; x voffset
  s_lshl_b32 s{sT0}, s{sHKV}, 9
  s_lshl_b32 s{sT1}, s{sS}, 7
  s_add_u32 s{sT0}, s{sT0}, s{sT1}
  s_mul_i32 s{sT1}, s{sB}, 144
  s_lshl_b32 s{sT2}, s3, 1
  s_add_u32 s{sT1}, s{sT1}, s{sT2}          ; row0 = 144b + 2w
  s_lshl_b32 s{sT2}, s{sT1}, 13
  s_add_u32 s{sA0}, s{sT2}, 8192
  s_lshl_b32 s{sT1}, s{sT1}, 1              ; x soffset (b'=0)
  s_waitcnt lgkmcnt(0)
  s_add_u32 s{rWQ}, s{sWQ}, s{sT0}
  s_addc_u32 s{rWQ+1}, s{sWQ+1}, 0
  s_and_b32 s{rWQ+1}, s{rWQ+1}, 0xffff
  s_sub_u32 s{rWQ+2}, {576*8192}, s{sT0}
  s_mov_b32 s{rWQ+3}, 0x20000
  s_mov_b32 s{rX}, s{sX}
  s_and_b32 s{rX+1}, s{sX+1}, 0xffff
  s_mov_b32 s{rX+2}, 4608
  s_mov_b32 s{rX+3}, 0x20000
""")
    if prio: a("  s_setprio 3")
    a(f"  buffer_load_dwordx4 {vr(vW,4)}, v3, {srd(rWQ)}, s{sT2} offen {wflag}")
    a(f"  buffer_load_dwordx4 {vr(vW+4,4)}, v3, {srd(rWQ)}, s{sA0} offen {wflag}")
    for bp in range(4):
        a(f"  buffer_load_dword v{vXD+bp}, v4, {srd(rX)}, s{sT1} offen offset:{bp*1152}")
    a(f"  s_load_dword s{sEP}, s[{sWS}:{sWS+1}], 0")
    a("  s_branch L_common")
    def build_k_srd():
        a(f"""  s_add_u32 s{rK}, s{sK}, s{sSLAB}
  s_addc_u32 s{rK+1}, s{sK+1}, 0
  s_and_b32 s{rK+1}, s{rK+1}, 0xffff
  s_mov_b32 s{rK+2}, 0x20000
  s_mov_b32 s{rK+3}, 0x20000""")
    def build_v_srd():
        a(f"""  s_add_u32 s{rV}, s{sV}, s{sSLAB}
  s_addc_u32 s{rV+1}, s{sV+1}, 0
  s_and_b32 s{rV+1}, s{rV+1}, 0xffff
  s_mov_b32 s{rV+2}, 0x20000
  s_mov_b32 s{rV+3}, 0x20000""")
    def k_off():
        a(f"""  v_lshrrev_b32 v4, 4, v{vL}                ; kgl
  v_and_b32 v5, 15, v{vL}
  v_lshlrev_b32 v6, 2, v4
  v_xor_b32 v5, v5, v6                      ; (l&15) ^ 4kgl
  v_lshlrev_b32 v5, 4, v5
  v_lshl_add_u32 v4, v4, 8, v5              ; voff_0
  v_xor_b32 v5, 16, v4
  v_xor_b32 v6, 32, v4
  v_xor_b32 v7, 48, v4""")
    def k_dma():
        a(f"""  s_lshl_b32 s{sT0}, s3, 13
  s_mov_b32 m0, s{sT0}
  s_add_u32 s{sT0}, s{sT0}, 4096""")
        n = 0
        for t in range(2):
            if t == 1:
                a(f"  s_mov_b32 m0, s{sT0}")
                a("  s_nop 0")
            for i in range(4):
                if kpace and n >= kpace: a(f"  s_waitcnt vmcnt({kpace-1})")
                a(f"  buffer_load_dwordx4 v{4+i}, {srd(rK)}, s{sP0+t} offen offset:{i*1024} {stream} lds")
                n += 1
    vcount = [0]
    def v_loads():
        if ne:
            vcount[0] += 1
            lab = f"L_noew{vcount[0]}"
            a(f"""  s_cmp_gt_u32 s3, 8
  s_cbranch_scc1 {lab}
  v_lshrrev_b32 v4, 3, v{vL}
  v_mul_u32_u24 v4, 1152, v4
  v_and_b32 v5, 7, v{vL}
  v_lshl_add_u32 v4, v5, 4, v4
  s_lshl_b32 s{sT0}, s3, 7""")
            for g in range(ne):
                a(f"  buffer_load_dwordx4 {vr(vW+4*g,4)}, v4, {srd(rWO)}, s{sT0} offen {wflag}")
                if g + 1 < ne: a(f"  s_add_u32 s{sT0}, s{sT0}, 9216")
            a(f"{lab}:")
        a(f"  v_lshlrev_b32 v4, 4, v{vL}")
        for t in range(2):
            for r in range(4):
                if vpace: a(f"  s_waitcnt vmcnt({vpace-1})")
                a(f"  buffer_load_dwordx4 {vr(vV+16*t+4*r,4)}, v4, {srd(rV)}, s{sP0+t} offen offset:{r*1024} {stream if vflag is None else vflag}")
    def wo_dma(i0, i1, lab):
        if not trY:
            a(f"""  s_sub_u32 s{sT0}, s3, {LB}
  s_mul_i32 s{sT1}, s{sT0}, {18*1024}
  s_add_u32 s{sT1}, s{sT1}, {i0*1024}
  s_mov_b32 s{sT2}, {i1-i0}
  v_lshlrev_b32 v4, 4, v{vL}
{lab}:
  s_mov_b32 m0, s{sT1}
  s_sub_u32 s{sT2}, s{sT2}, 1
  buffer_load_dwordx4 v4, {srd(rWO)}, s{sT1} offen {wflag if woflag is None else woflag} lds
  s_add_u32 s{sT1}, s{sT1}, 1024
  s_cmp_lg_u32 s{sT2}, 0
  s_cbranch_scc1 {lab}
""")
            return
        fl = wflag if woflag is None else woflag
        a(f"""  s_sub_u32 s{sT0}, s3, {LB}
  s_lshl_b32 s{sT1}, s{sT0}, 14              ; LDS: 16j*1024
  s_mul_i32 s{sT2}, s{sT0}, {16*1152}        ; global: 16j*1152
  s_add_u32 s{sT1}, s{sT1}, {i0*1024}
  s_add_u32 s{sT2}, s{sT2}, {i0*1152}
  v_lshlrev_b32 v4, 4, v{vL}""")
        for i in range(i0, min(i1, 16)):
            F16 = 32*((i & 1) + 2*((i >> 1) & 1) + 4*((i >> 3) & 1))
            d = 5 + (i & 1)
            if F16: a(f"  v_xor_b32 v{d}, {F16}, v4")
            a(f"  s_mov_b32 m0, s{sT1}")
            a(f"  s_add_u32 s{sT1}, s{sT1}, 1024")
            a(f"  buffer_load_dwordx4 v{d if F16 else 4}, {srd(rWO)}, s{sT2} offen {fl} lds")
            a(f"  s_add_u32 s{sT2}, s{sT2}, 1152")
        if i1 < 18:
            assert i1 <= 16
            return
        a(f"""  v_lshrrev_b32 v5, 3, v{vL}
  v_mul_u32_u24 v5, 1152, v5
  v_and_b32 v6, 7, v{vL}
  v_bfe_u32 v7, v{vL}, 4, 1
  v_lshlrev_b32 v7, 1, v7
  v_xor_b32 v6, v6, v7
  v_lshl_add_u32 v5, v6, 4, v5
  v_add_u32 v5, 1024, v5                     ; r3 = 0 variant
  v_xor_b32 v6, 64, v5
  s_lshl_b32 s{sT1}, s{sT0}, 11
  s_add_u32 s{sT1}, s{sT1}, 65536            ; LDS: 65536 + 2j*1024
  s_mul_i32 s{sT2}, s{sT0}, {16*1152}
  s_mov_b32 m0, s{sT1}
  s_add_u32 s{sT1}, s{sT1}, 1024
  buffer_load_dwordx4 v5, {srd(rWO)}, s{sT2} offen {fl} lds
  s_add_u32 s{sT2}, s{sT2}, {8*1152}
  s_mov_b32 m0, s{sT1}
  s_nop 0
  buffer_load_dwordx4 v6, {srd(rWO)}, s{sT2} offen {fl} lds
""")
    a("L_noq:")
    k_off()
    a("  s_waitcnt lgkmcnt(0)")
    build_k_srd()
    a(f"  s_load_dword s{sEP}, s[{sWS}:{sWS+1}], 0")
    if prio: a("  s_setprio 2")
    k_dma()
    if prio: a("  s_setprio 0")
    build_v_srd()
    a(f"""  s_cmp_lg_u32 s3, 9
  s_cbranch_scc1 L_common2
  v_mov_b32 v{vXD}, 0
  v_lshlrev_b32 v4, 2, v{vL}
  v_add_u32 v4, {L_FLAG}, v4
  s_mov_b64 exec, 0xffff
  ds_write_b32 v4, v{vXD}
  s_mov_b64 exec, -1
  s_branch L_common2
""")
    a("L_common:")
    build_k_srd()
    build_v_srd()
    a("L_common2:")
    a(f"""  s_mov_b32 s{rWS}, s{sWS}
  s_and_b32 s{rWS+1}, s{sWS+1}, 0xffff
  s_mov_b32 s{rWS+2}, {W_SIZE}
  s_mov_b32 s{rWS+3}, 0x20000
  s_mul_i32 s{sT0}, s{sSRC}, {64*1152}
  s_add_u32 s{rWO}, s{sWO}, s{sT0}
  s_addc_u32 s{rWO+1}, s{sWO+1}, 0
  s_and_b32 s{rWO+1}, s{rWO+1}, 0xffff
  s_mov_b32 s{rWO+2}, {64*1152}
  s_mov_b32 s{rWO+3}, 0x20000
  s_mov_b32 s{rO}, s{sOUT}
  s_and_b32 s{rO+1}, s{sOUT+1}, 0xffff
  s_mov_b32 s{rO+2}, 4608
  s_mov_b32 s{rO+3}, 0x20000
  s_mov_b32 s{sSC}, {f32hex(math.log2(math.e) if mimic else SCALE)}
  s_movk_i32 s{sFF}, 0xff
  s_getreg_b32 s{sXCC}, hwreg(HW_REG_XCC_ID, 0, 4)
  v_mov_b32 v{vPA}, 0
  v_mov_b32 v{vPB}, 0
  v_and_b32 v4, 1, v{vL}
  v_cmp_eq_u32 vcc, 1, v4
  v_mov_b32 v5, 0x0c0c0100
  v_mov_b32 v6, 0x01000c0c
  v_cndmask_b32 v5, v5, v6, vcc             ; e=0 pattern
  v_mov_b32 v6, 0x0c0c0302
  v_mov_b32 v7, 0x03020c0c
  v_cndmask_b32 v6, v6, v7, vcc             ; e=1 pattern
  v_bfe_u32 v4, v{vL}, 1, 2                 ; (l&7)>>1
  v_mov_b32 v7, 0x0c0c0c0c
""")
    for i in range(4):
        a(f"""  v_cmp_eq_u32 vcc, {i}, v4
  s_nop 1
  v_cndmask_b32 v{vSEL+2*i}, v7, v5, vcc
  v_cndmask_b32 v{vSEL+2*i+1}, v7, v6, vcc""")
    def diag_mfma(src_pairs, data, acc, waits, tmpA=(vQF, vQF+4)):
        def perms(g):
            A = tmpA[g & 1]
            for i in range(4):
                a(f"  v_perm_b32 v{A+i}, v{src_pairs+(g>>1)}, v{src_pairs+(g>>1)}, v{vSEL+2*i+(g&1)}")
        perms(0)
        for g in range(8):
            A = tmpA[g & 1]
            if g + 1 < 8:
                perms(g+1)
            else:
                a("  s_nop 1")
            w = waits(g)
            if w: a(f"  {w}")
            ac = acc(g) if callable(acc) else acc
            a(f"  v_mfma_f32_16x16x32_bf16 {vr(ac,4)}, {vr(A,4)}, {vr(data(g),4)}, {vr(ac,4)}")
    a(f"""  s_waitcnt lgkmcnt(0)
  s_add_u32 s{sEP}, s{sEP}, 1
  s_and_b32 s{sTAG}, s{sEP}, 0xff
  v_mov_b32 v{vTAG}, s{sTAG}
  s_mov_b32 s{sVI}, 0
  s_barrier
""")
    stamp('binit')
    vQA = vV
    a(f"""  s_cmp_ge_u32 s3, 9
  s_cbranch_scc1 L_noqc""")
    for i in range(16): a(f"  v_mov_b32 v{vQA+i}, 0")
    a("  s_waitcnt vmcnt(0)")
    diag_mfma(vXD, lambda k: vW+4*(k&1), lambda k: vQA+4*(k>>1), lambda k: None)
    a(f"""  v_lshrrev_b32 v4, 5, v{vL}                ; sel
  v_bfe_u32 v5, v{vL}, 4, 1                 ; jh
  v_lshlrev_b32 v4, 1, v4
  v_add_u32 v4, v4, v5
  v_and_b32 v5, 7, v{vL}
  v_lshl_add_u32 v4, v4, 3, v5
  v_lshlrev_b32 v4, 4, v4
  s_lshl_b32 s{sT0}, s3, 11
  s_add_u32 s{sT0}, s{sT0}, {L_QP}
  v_add_u32 v4, s{sT0}, v4
  s_mov_b32 exec_lo, 0x00ff00ff
  s_mov_b32 exec_hi, 0xff00ff00
  s_nop 0""")
    for bp in range(4):
        a(f"  ds_write_b128 v4, {vr(vQA+4*bp,4)} offset:{bp*512}")
    a("  s_mov_b64 exec, -1")
    ldsinc(L_QCNT)
    stamp('qpart')
    k_off()
    if prio: a("  s_setprio 2")
    k_dma()
    if prio: a("  s_setprio 0")
    a("  s_branch L_kdone")
    a("L_noqc:")
    a("  s_cmp_lt_u32 s3, 12")
    a("  s_cbranch_scc1 L_kdone")
    ldsspin('L_spinc', L_QCNT, 9, sp_c)
    stamp('qpart')
    a(f"""  s_sub_u32 s{sT3}, s3, 12                  ; b'
  v_lshrrev_b32 v4, 3, v{vL}                ; c
  v_bfe_u32 v5, v{vL}, 2, 1                 ; jh
  v_lshl_add_u32 v4, v5, 3, v4              ; jh*8 + c
  v_lshlrev_b32 v4, 4, v4
  v_and_b32 v5, 3, v{vL}
  v_lshl_add_u32 v4, v5, 2, v4
  s_lshl_b32 s{sT0}, s{sT3}, 9
  s_add_u32 s{sT0}, s{sT0}, {L_QP}
  v_add_u32 v4, s{sT0}, v4
""")
    for w in range(9):
        a(f"  ds_read_b32 v{vQF+2*w}, v4 offset:{w*2048}")
        a(f"  ds_read_b32 v{vQF+2*w+1}, v4 offset:{w*2048+256}")
        if w == 6: a("  s_waitcnt lgkmcnt(4)")
    a(f"""  s_lshl_b32 s{sT0}, s{sT3}, 4
  s_add_u32 s{sT0}, s{sT0}, s{sHKV}
  s_lshl_b32 s{sT0}, s{sT0}, 2
  s_add_u32 s{sT0}, s{sT0}, s{sB}
  s_lshl_b32 s{sT0}, s{sT0}, 10
  s_lshl_b32 s{sT1}, s{sS}, 8
  s_add_u32 s{sT1}, s{sT1}, s{sT0}
  s_add_u32 s{sT1}, s{sT1}, {W_X0}
  v_lshlrev_b32 v4, 2, v{vL}
  s_waitcnt lgkmcnt(0)""")
    q = treesum([vQF+i for i in range(18)])
    a(f"""  v_bfi_b32 v6, s{sFF}, v{vTAG}, v{q}
  s_setprio 3
  buffer_store_dword v6, v4, {srd(rWS)}, s{sT1} offen
  s_add_u32 s{sT1}, s{sT1}, {W_X0B - W_X0}
  buffer_store_dword v6, v4, {srd(rWS)}, s{sT1} offen {st_flags}
  s_setprio 0
  s_cmp_lg_u32 s3, 15
  s_cbranch_scc1 L_kdone
  s_lshl_b32 s{sT0}, s{sGRP}, 6
  s_lshl_b32 s{sT1}, s{sS}, 2
  s_add_u32 s{sT0}, s{sT0}, s{sT1}
  s_add_u32 s{sT0}, s{sT0}, {W_XID}
  s_lshl_b32 s{sT1}, s{sXCC}, 8
  s_or_b32 s{sT1}, s{sT1}, s{sTAG}
  v_mov_b32 v6, s{sT1}
  v_mov_b32 v5, 0
  s_mov_b64 exec, 1
  s_setprio 3
  buffer_store_dword v6, v5, {srd(rWS)}, s{sT0} offen {st_flags}
  s_setprio 0
  s_mov_b64 exec, -1
  s_lshl_b32 s{sA1}, s{sGRP}, 6
  s_add_u32 s{sA1}, s{sA1}, {W_XID}
  v_mov_b32 v3, 0
  s_lshl_b32 s{sA0}, s{sGRP}, 12
  s_add_u32 s{sA0}, s{sA0}, {W_X0}
  v_lshlrev_b32 v4, 4, v{vL}
""")
    d = delay0
    while d > 0:
        a(f"  s_sleep {min(d,127)}"); d -= 127
    def l0load(j):
        a(f"  s_cmp_eq_u32 s{sCNT}, {dual0}")
        a(f"  s_cselect_b32 s{sT2}, {W_X0B - W_X0}, 0")
        a(f"  s_add_u32 s{sA0}, s{sA0}, s{sT2}")
        a("  s_setprio 3")
        for rb in range(4):
            a(f"  buffer_load_dwordx4 {vr(vW+4*rb,4)}, v4, {srd(rWS)}, s{sA0} offen offset:{rb*1024} {ld_flags}")
        if idvec: a(f"  buffer_load_dwordx4 {vr(vW+16,4)}, v3, {srd(rWS)}, s{sA1} offen {ld_flags}")
        a("  s_setprio 0")
    pollpipe('L_poll0', 1, l0load, 5 if idvec else 4, lambda j: [vW+i for i in range(16)], vQF, [vW+i for i in range(16)], 0, sleep0)
    if idvec:
        a(f"""  s_lshl_b32 s{sT2}, s{sXCC}, 8
  s_or_b32 s{sT2}, s{sT2}, s{sTAG}
  v_xor_b32 v{vW+16}, s{sT2}, v{vW+16}
  v_xor_b32 v{vW+17}, s{sT2}, v{vW+17}
  v_xor_b32 v{vW+18}, s{sT2}, v{vW+18}
  v_xor_b32 v{vW+19}, s{sT2}, v{vW+19}
  v_or3_b32 v{vW+16}, v{vW+16}, v{vW+17}, v{vW+18}
  v_or_b32 v{vW+16}, v{vW+16}, v{vW+19}
  v_and_b32 v{vW+16}, 0xffff, v{vW+16}
  v_cmp_eq_u32 vcc, 0, v{vW+16}
  s_nop 1
  v_cndmask_b32 v6, 0, 1, vcc
  v_mov_b32 v7, {L_SAME}
  ds_write_b32 v7, v6""")
    for i in range(4):
        a(f"  v_add_f32 v{vW+i}, v{vW+i}, v{vW+4+i}")
        a(f"  v_add_f32 v{vW+8+i}, v{vW+8+i}, v{vW+12+i}")
    for i in range(4):
        a(f"  v_add_f32 v{vW+i}, v{vW+i}, v{vW+8+i}")
    a(f"""  v_cvt_pk_bf16_f32 v{vQF}, v{vW}, v{vW+1}
  v_cvt_pk_bf16_f32 v{vQF+1}, v{vW+2}, v{vW+3}
  v_lshlrev_b32 v4, 3, v{vL}
  v_add_u32 v4, {L_QF}, v4
  ds_write_b64 v4, {vr(vQF,2)}
  v_mov_b32 v5, 1
  v_mov_b32 v4, {L_FLAG}
  s_waitcnt lgkmcnt(0)
  ds_write_b32 v4, v5
""")
    stamp('exdone')
    a("L_kdone:")
    if qkfirst:
        a(f"""  v_mov_b32 v4, {L_FLAG}
  ds_read_b32 v5, v4
  s_waitcnt lgkmcnt(0)
  v_readfirstlane_b32 s{sT0}, v5
  s_cmp_eq_u32 s{sT0}, 1
  s_cbranch_scc1 L_gotq
""")
    a(f"  s_mov_b32 s{sVI}, 1")
    if earlypv and vprio:
        a(f"""  s_sub_u32 s{sT0}, s3, {LB}
  s_cmp_lt_u32 s{sT0}, 4
  s_cbranch_scc0 L_vp0
  s_setprio {vprio}
L_vp0:""")
    v_loads()
    if earlypv and vprio: a("  s_setprio 0")
    stamp('vissued')
    ldsspin('L_spinq', L_FLAG, 1, sp_q)
    a("L_gotq:")
    stamp('gotq')
    a(f"""  v_bfe_u32 v4, v{vL}, 3, 1                 ; h
  v_lshrrev_b32 v5, 4, v{vL}                ; kg
  v_lshlrev_b32 v4, 8, v4
  v_lshl_add_u32 v4, v5, 4, v4
  v_add_u32 v4, {L_QF}, v4
""")
    for st in range(4):
        a(f"  ds_read_b128 {vr(vQF+4*st,4)}, v4 offset:{st*64}")
    a(f"""  v_and_b32 v6, 15, v{vL}                   ; m
  v_xor_b32 v5, v5, v6                      ; kg ^ m
  v_lshlrev_b32 v5, 4, v5
  v_and_b32 v7, 3, v6
  v_lshlrev_b32 v7, 2, v7
  v_lshrrev_b32 v6, 2, v6
  v_add_u32 v6, v6, v7                      ; rho
  v_lshl_add_u32 v4, v6, 8, v5
  s_lshl_b32 s{sT0}, s3, 13
  v_add_u32 v4, s{sT0}, v4
  v_xor_b32 v5, 64, v4
  v_xor_b32 v6, 128, v4
  v_xor_b32 v7, 192, v4
""")
    for i in range(8): a(f"  v_mov_b32 v{vS+i}, 0")
    a(f"""  s_cmp_eq_u32 s{sVI}, 1
  s_cbranch_scc1 L_kw8
  s_waitcnt vmcnt(0)
  s_branch L_kwd
L_kw8:
  s_waitcnt vmcnt(8)
L_kwd:""")
    stamp('karr')
    for t in range(2):
        for st in range(4):
            a(f"  ds_read_b128 {vr(vKF+4*st,4)}, v{4+st} offset:{t*4096}")
        for st in range(4):
            a(f"  s_waitcnt lgkmcnt({3-st})")
            a(f"  v_mfma_f32_16x16x32_bf16 {vr(vS+4*t,4)}, {vr(vKF+4*st,4)}, {vr(vQF+4*st,4)}, {vr(vS+4*t,4)}")
    vM, vLs, vP = vQF, vQF+1, vQF+2
    vT = vQF+6
    a("  s_nop 7")
    if mimic:
        a(f"  s_mov_b32 s{sT1}, {f32hex(128 ** -0.5)}")
        a(f"  s_mov_b32 s{sT2}, 0xffff0000")
        for i in range(4):
            a(f"  v_cvt_pk_bf16_f32 v{vKF+i}, v{vS+2*i}, v{vS+2*i+1}")
        for i in range(4):
            a(f"  v_lshlrev_b32 v{vS+2*i}, 16, v{vKF+i}")
            a(f"  v_and_b32 v{vS+2*i+1}, s{sT2}, v{vKF+i}")
        for i in range(8):
            a(f"  v_mul_f32 v{vS+i}, s{sT1}, v{vS+i}")
        for i in range(4):
            a(f"  v_cvt_pk_bf16_f32 v{vKF+i}, v{vS+2*i}, v{vS+2*i+1}")
        for i in range(4):
            a(f"  v_lshlrev_b32 v{vS+2*i}, 16, v{vKF+i}")
            a(f"  v_and_b32 v{vS+2*i+1}, s{sT2}, v{vKF+i}")
    a(f"""  v_max3_f32 v{vM}, v{vS}, v{vS+1}, v{vS+2}
  v_max3_f32 v{vT}, v{vS+3}, v{vS+4}, v{vS+5}
  v_max3_f32 v{vM}, v{vM}, v{vS+6}, v{vS+7}
  v_max_f32 v{vM}, v{vM}, v{vT}
  v_mov_b32 v{vT}, v{vM}
  s_nop 1
  v_permlane16_swap_b32 v{vM}, v{vT}
  s_nop 1
  v_max_f32 v{vM}, v{vM}, v{vT}
  v_mov_b32 v{vT}, v{vM}
  s_nop 1
  v_permlane32_swap_b32 v{vM}, v{vT}
  s_nop 1
  v_max_f32 v{vM}, v{vM}, v{vT}
  v_mul_f32 v{vM}, s{sSC}, v{vM}
  v_bfe_u32 v4, v{vL}, 3, 1
  v_lshlrev_b32 v4, 2, v4
  s_lshl_b32 s{sT0}, s3, 3
  s_add_u32 s{sT0}, s{sT0}, {L_MX}
  v_add_u32 v4, s{sT0}, v4
  s_mov_b32 exec_lo, 0x101
  s_mov_b32 exec_hi, 0
  ds_write_b32 v4, v{vM}
  s_mov_b64 exec, -1
""")
    for i in range(8):
        a(f"  v_fma_f32 v{vS+i}, v{vS+i}, s{sSC}, -v{vM}")
    for i in range(8):
        a(f"  v_exp_f32 v{vS+i}, v{vS+i}")
    a("  s_nop 0")
    a(f"""  v_add_f32 v{vLs}, v{vS}, v{vS+1}
  v_add_f32 v{vT}, v{vS+2}, v{vS+3}
  v_add_f32 v{vT+1}, v{vS+4}, v{vS+5}
  v_add_f32 v{vT+2}, v{vS+6}, v{vS+7}
  v_add_f32 v{vLs}, v{vLs}, v{vT}
  v_add_f32 v{vT+1}, v{vT+1}, v{vT+2}
  v_add_f32 v{vLs}, v{vLs}, v{vT+1}
  v_cvt_pk_bf16_f32 v{vP}, v{vS}, v{vS+1}
  v_cvt_pk_bf16_f32 v{vP+1}, v{vS+2}, v{vS+3}
  v_cvt_pk_bf16_f32 v{vP+2}, v{vS+4}, v{vS+5}
  v_cvt_pk_bf16_f32 v{vP+3}, v{vS+6}, v{vS+7}
  v_mov_b32 v{vT}, v{vLs}
  s_nop 1
  v_permlane16_swap_b32 v{vLs}, v{vT}
  s_nop 1
  v_add_f32 v{vLs}, v{vLs}, v{vT}
  v_mov_b32 v{vT}, v{vLs}
  s_nop 1
  v_permlane32_swap_b32 v{vLs}, v{vT}
  s_nop 1
  v_add_f32 v{vLs}, v{vLs}, v{vT}
  s_cmp_eq_u32 s{sVI}, 1
  s_cbranch_scc1 L_vdone
""")
    v_loads()
    a("L_vdone:")
    stamp('smdone')
    tA = (vQF+10, vQF+14)
    if earlypv:
        a(f"""  s_sub_u32 s{sT0}, s3, {LB}
  s_cmp_lt_u32 s{sT0}, 4
  s_cbranch_scc0 L_nopv0
  v_mov_b32 v{vACC}, 0
  v_mov_b32 v{vACC+1}, 0
  v_mov_b32 v{vACC+2}, 0
  v_mov_b32 v{vACC+3}, 0""")
        diag_mfma(vP, lambda g: vV+4*g, vACC, lambda g: f"s_waitcnt vmcnt({7-g})", tA)
        a("L_nopv0:")
    a("""  s_waitcnt lgkmcnt(0)
  s_barrier
""")
    stamp('bmax')
    if dmafirst:
        a(f"""  s_sub_u32 s{sT0}, s3, {LB}
  s_cmp_lt_u32 s{sT0}, 4
  s_cbranch_scc0 L_nodma0""")
        wo_dma(0, dmafirst, 'L_wol0')
        a("L_nodma0:")
    vF, vMG = vQF+6, vQF+7
    a(f"""  v_and_b32 v4, 15, v{vL}
  v_lshlrev_b32 v4, 3, v4
  v_lshrrev_b32 v5, 5, v{vL}                ; h' = l>>5
  v_lshl_add_u32 v4, v5, 2, v4
  v_add_u32 v4, {L_MX}, v4
  ds_read_b32 v{vMG}, v4
  s_lshl_b32 s{sT0}, s3, 3
  s_add_u32 s{sT0}, s{sT0}, {L_MX}
  v_lshlrev_b32 v5, 2, v5
  v_add_u32 v5, s{sT0}, v5
  ds_read_b32 v{vF}, v5                     ; own m_w[h']
  v_add_u32 v{vT+2}, {L_LL-L_MX}, v5
  s_waitcnt lgkmcnt(0)
  v_max_f32_dpp v{vMG}, v{vMG}, v{vMG} row_ror:8 row_mask:0xf bank_mask:0xf
  s_nop 1
  v_max_f32_dpp v{vMG}, v{vMG}, v{vMG} row_ror:4 row_mask:0xf bank_mask:0xf
  s_nop 1
  v_max_f32_dpp v{vMG}, v{vMG}, v{vMG} row_ror:2 row_mask:0xf bank_mask:0xf
  s_nop 1
  v_max_f32_dpp v{vMG}, v{vMG}, v{vMG} row_ror:1 row_mask:0xf bank_mask:0xf
  s_nop 0
  v_sub_f32 v{vF}, v{vF}, v{vMG}
  v_exp_f32 v{vF}, v{vF}
  s_nop 0
  v_mul_f32 v{vLs}, v{vLs}, v{vF}
  s_mov_b32 exec_lo, 1
  s_mov_b32 exec_hi, 0x100
  ds_write_b32 v{vT+2}, v{vLs}
  s_mov_b64 exec, -1
""")
    a(f"""  s_cmp_lt_u32 s3, 9
  s_cbranch_scc1 L_preY
  s_cmp_lt_u32 s3, 12
  s_cbranch_scc1 L_preC
  v_mov_b32 v4, {L_SAME}
  ds_read_b32 v5, v4
  s_waitcnt lgkmcnt(0)
  v_readfirstlane_b32 s{sSAME}, v5
  s_sub_u32 s{sT3}, s3, 12
  v_lshrrev_b32 v4, 3, v{vL}
  v_bfe_u32 v5, v{vL}, 2, 1
  v_lshl_add_u32 v4, v5, 4, v4               ; (l>>3) + 16*b4
  s_lshr_b32 s{sT0}, s{sT3}, 1               ; h
  s_and_b32 s{sT1}, s{sT3}, 1
  s_lshl_b32 s{sH32}, s{sT0}, 5              ; 32h
  s_lshl_b32 s{sT1}, s{sT1}, 3
  s_add_u32 s{sT1}, s{sT1}, s{sH32}          ; 32h + 8(d&1)
  v_add_u32 v4, s{sT1}, v4                   ; lane'
  v_and_b32 v5, 3, v{vL}
  v_lshlrev_b32 v5, 2, v5
  v_lshl_add_u32 v{vPA}, v4, 4, v5           ; lane'*16 + r*4
  v_add_u32 v{vPA}, {L_OP}, v{vPA}
  v_and_b32 v6, 15, v{vL}
  v_lshlrev_b32 v6, 3, v6
  s_lshl_b32 s{sT1}, s{sT0}, 2
  s_add_u32 s{sT1}, s{sT1}, {L_LL}
  v_add_u32 v{vPC}, s{sT1}, v6
  v_lshlrev_b32 v{vPD}, 3, v{vL}             ; l*8
  v_readlane_b32 s{sT1}, v{vMG}, s{sH32}
  s_nop 2
  v_mov_b32 v126, s{sT1}
  v_bfi_b32 v127, s{sFF}, v{vTAG}, v126
  v_sub_f32 v126, v126, v127
  v_exp_f32 v126, v126
  s_lshl_b32 s{sT0}, s{sGRP}, 13
  s_add_u32 s{sT0}, s{sT0}, {W_X1}
  s_lshl_b32 s{sT1}, s{sT3}, 11              ; dst*2048
  s_add_u32 s{sA0}, s{sT0}, s{sT1}
  s_lshl_b32 s{sT1}, s{sS}, 9                ; src*512
  s_add_u32 s{sA0}, s{sA0}, s{sT1}
  s_lshl_b32 s{sT1}, s{sS}, 11
  s_add_u32 s{sT0}, s{sT0}, s{sT1}
  s_add_u32 s{sT1}, s{sS}, 1
  s_and_b32 s{sT1}, s{sT1}, 3
  s_lshl_b32 s{sT1}, s{sT1}, 9
  s_add_u32 s{sA1}, s{sT0}, s{sT1}
  s_add_u32 s{sT1}, s{sS}, 2
  s_and_b32 s{sT1}, s{sT1}, 3
  s_lshl_b32 s{sT1}, s{sT1}, 9
  s_add_u32 s{sA2}, s{sT0}, s{sT1}
  s_add_u32 s{sT1}, s{sS}, 3
  s_and_b32 s{sT1}, s{sT1}, 3
  s_lshl_b32 s{sT1}, s{sT1}, 9
  s_add_u32 s{sA3}, s{sT0}, s{sT1}
  s_branch L_pv
L_preY:
""")
    if trY:
        a(f"""  ; y waves 0..8: tr-read addresses v120..v123 (tau), y store voffset (vPB), OT address (vPC)
  v_lshrrev_b32 v4, 4, v{vL}                 ; g4
  v_bfe_u32 v5, v{vL}, 2, 2                  ; rr
  v_bfe_u32 v6, v{vL}, 1, 1                  ; x = cc>>1
  v_and_b32 v7, 1, v{vL}                     ; cc&1
  s_cmp_eq_u32 s3, 8
  s_cbranch_scc1 L_preYt
  v_and_b32 v{vPA}, 1, v4
  v_lshl_add_u32 v{vPA}, v{vPA}, 2, v5       ; rr + 4*(g4&1)
  v_lshlrev_b32 v{vPA}, 1, v{vPA}            ; Fl
  s_lshl_b32 s{sT0}, s3, 3
  v_add_u32 v6, s{sT0}, v6                   ; 8t + x
  v_xor_b32 v6, v6, v{vPA}
  v_lshlrev_b32 v6, 4, v6
  v_lshl_add_u32 v6, v7, 3, v6
  v_lshl_add_u32 v5, v4, 3, v5               ; 8*g4 + rr
  v_lshl_add_u32 v120, v5, 10, v6
  s_branch L_preYc
L_preYt:
  v_lshrrev_b32 v{vPA}, 1, v5                ; r1
  v_and_b32 v{vPC}, 1, v4                    ; r3
  v_lshl_add_u32 v{vPA}, v{vPC}, 1, v{vPA}   ; r1 + 2*r3
  v_lshlrev_b32 v{vPA}, 1, v{vPA}            ; f
  v_xor_b32 v6, v6, v{vPA}
  v_lshlrev_b32 v6, 4, v6
  v_lshl_add_u32 v6, v7, 3, v6
  v_lshl_add_u32 v6, v5, 7, v6               ; + rr*128
  v_lshl_add_u32 v6, v4, 10, v6              ; + g4*1024
  v_add_u32 v120, 65536, v6
L_preYc:
  v_xor_b32 v121, 32, v120
  v_xor_b32 v122, 64, v120
  v_xor_b32 v123, 96, v120
  v_lshlrev_b32 v{vPC}, 4, v4
  v_add_u32 v{vPC}, {L_OT}, v{vPC}
  v_lshlrev_b32 v4, 12, v4
  v_and_b32 v5, 15, v{vL}
  v_lshl_add_u32 v{vPB}, v5, 2, v4           ; g4*4096 + (l&15)*4""")
    else:
        a(f"""  ; y waves 0..8: B-frag LDS address (vPA), y store voffset (vPB), OT address (vPC)
  v_lshrrev_b32 v4, 3, v{vL}
  v_mul_u32_u24 v{vPA}, 1152, v4
  v_and_b32 v5, 7, v{vL}
  v_lshl_add_u32 v{vPA}, v5, 4, v{vPA}
  s_lshl_b32 s{sT0}, s3, 7
  v_add_u32 v{vPA}, s{sT0}, v{vPA}           ; cls*1152 + c*16 + t*128
  v_lshlrev_b32 v{vPC}, 4, v4
  v_add_u32 v{vPC}, {L_OT}, v{vPC}
  v_bfe_u32 v4, v{vL}, 1, 2
  v_lshlrev_b32 v4, 12, v4
  v_and_b32 v5, 1, v{vL}
  v_lshl_add_u32 v4, v5, 5, v4
  v_bfe_u32 v5, v{vL}, 4, 1
  v_lshl_add_u32 v{vPB}, v5, 4, v4""")
    a(f"""  s_mul_i32 s{sT0}, s{sB}, {36*4096}
  s_add_u32 s{sT0}, s{sT0}, {W_X2}
  s_lshl_b32 s{sT1}, s3, 14
  s_add_u32 s{sT0}, s{sT0}, s{sT1}
  s_lshl_b32 s{sT1}, s{sSRC}, 6
  s_add_u32 s{sA2}, s{sT0}, s{sT1}
  s_branch L_pv
L_preC:
  s_mul_i32 s{sT0}, s{sB}, {36*4096}
  s_add_u32 s{sT0}, s{sT0}, {W_X2}
  s_lshl_b32 s{sT2}, s{sSRC}, 12
  s_add_u32 s{sA0}, s{sT0}, s{sT2}           ; inbox
  s_mul_i32 s{sT0}, s{sB}, 1152
  s_lshl_b32 s{sT2}, s{sSRC}, 5
  s_add_u32 s{sA1}, s{sT0}, s{sT2}
  v_lshlrev_b32 v{vPA}, 4, v{vL}
  v_lshlrev_b32 v{vPB}, 3, v{vL}
L_pv:
  v_lshlrev_b32 v{vT+2}, 4, v{vL}
  s_lshl_b32 s{sT0}, s3, 10
  s_add_u32 s{sT0}, s{sT0}, {L_OP}
  v_add_u32 v{vT+2}, s{sT0}, v{vT+2}
""")
    if earlypv:
        a(f"""  s_sub_u32 s{sT0}, s3, {LB}
  s_cmp_lt_u32 s{sT0}, 4
  s_cbranch_scc1 L_pvd""")
    a(f"""  v_mov_b32 v{vACC}, 0
  v_mov_b32 v{vACC+1}, 0
  v_mov_b32 v{vACC+2}, 0
  v_mov_b32 v{vACC+3}, 0""")
    if dmafirst and not earlypv:
        a(f"""  s_sub_u32 s{sT0}, s3, {LB}
  s_cmp_lt_u32 s{sT0}, 4
  s_cbranch_scc0 L_pvN""")
        diag_mfma(vP, lambda g: vV+4*g, vACC, lambda g: f"s_waitcnt vmcnt({dmafirst+7-g})", tA)
        a("  s_branch L_pvd")
        a("L_pvN:")
    diag_mfma(vP, lambda g: vV+4*g, vACC, lambda g: f"s_waitcnt vmcnt({7-g})", tA)
    a("L_pvd:")
    stamp('pvdone')
    a(f"""  v_mov_b32 v5, {L_PCNT}
  v_mov_b32 v6, 1
  s_nop 5
  v_mul_f32 v{vACC}, v{vACC}, v{vF}
  v_mul_f32 v{vACC+1}, v{vACC+1}, v{vF}
  v_mul_f32 v{vACC+2}, v{vACC+2}, v{vF}
  v_mul_f32 v{vACC+3}, v{vACC+3}, v{vF}
  ds_write_b128 v{vT+2}, {vr(vACC,4)}
  s_mov_b64 exec, 1
  s_waitcnt lgkmcnt(0)
  ds_add_u32 v5, v6
  s_mov_b64 exec, -1
  s_cmp_ge_u32 s3, 12
  s_cbranch_scc1 L_D
  s_sub_u32 s{sT0}, s3, {LB}
  s_cmp_lt_u32 s{sT0}, 4
  s_cbranch_scc1 L_LD
  s_cmp_lt_u32 s3, 9
  s_cbranch_scc1 L_Y
  s_branch L_postld
L_LD:
""")
    if dmafirst < 18:
        wo_dma(dmafirst, 18, 'L_wol')
    stamp('woissued')
    a("  s_waitcnt vmcnt(0)")
    stamp('woarr0')
    ldsinc(L_WCNT)
    a(f"""  s_cmp_lt_u32 s3, 9
  s_cbranch_scc1 L_Y
L_postld:
  {'s_barrier' if bar_e else ''}
  s_cmp_lg_u32 s3, 9
  s_cbranch_scc1 L_fin
  s_cmp_ge_u32 s{sSRC}, 36
  s_cbranch_scc1 L_fin
""")
    G = vKF + 2
    if bar_y: a("  s_barrier")
    elif ycnt: ldsspin('L_spinc2', L_YCNT, 9, 1)
    else: ldsspin('L_spinc2', L_FLG2, 1, 2)
    stamp('be')
    def l2loads(j):
        for i in range(4):
            a(f"  buffer_load_dwordx4 {vr(vV+16*j+4*i,4)}, v{vPA}, {srd(rWS)}, s{sA0} offen offset:{i*1024} {ld_flags}")
    if delay2: a(f"  s_sleep {delay2}")
    if ns2 == 1: G = vV
    pollpipe('L_poll2', ns2, l2loads, 4, lambda j: [vV+16*j+i for i in range(16)], vQF, [G+i for i in range(16)], stag2, sleep2)
    for r in range(4):
        a(f"  v_add_f32 v{G+r}, v{G+r}, v{G+4+r}")
        a(f"  v_add_f32 v{G+8+r}, v{G+8+r}, v{G+12+r}")
    for r in range(4):
        a(f"  v_add_f32 v{G+r}, v{G+r}, v{G+8+r}")
    a("  s_nop 0")
    for rot in (4, 8):
        for r in range(4):
            a(f"  v_add_f32_dpp v{G+r}, v{G+r}, v{G+r} row_ror:{rot} row_mask:0xf bank_mask:0xf")
    for swp in ('v_permlane16_swap_b32', 'v_permlane32_swap_b32'):
        for r in range(4):
            a(f"  v_mov_b32 v{G+4+r}, v{G+r}")
        a("  s_nop 0")
        for r in range(4):
            a(f"  {swp} v{G+r}, v{G+4+r}")
        a("  s_nop 0")
        for r in range(4):
            a(f"  v_add_f32 v{G+r}, v{G+r}, v{G+4+r}")
    a(f"""  v_cvt_pk_bf16_f32 v6, v{G}, v{G+1}
  v_cvt_pk_bf16_f32 v7, v{G+2}, v{G+3}
  s_mov_b32 exec_lo, 0xf
  s_mov_b32 exec_hi, 0
  buffer_store_dwordx2 v[6:7], v{vPB}, {srd(rO)}, s{sA1} offen {outfl}
  s_or_b32 s{sT0}, s{sSRC}, s{sB}
  s_cmp_lg_u32 s{sT0}, 0
  s_cbranch_scc1 L_fin0
  s_mov_b32 exec_lo, 1
  v_mov_b32 v5, s{sEP}
  v_mov_b32 v4, 0
  buffer_store_dword v5, v4, {srd(rWS)}, 0 offen {outfl}
L_fin0:
  s_mov_b64 exec, -1
  s_branch L_fin
""")
    G = vKF + 2
    a("L_D:")
    a("  s_setprio 3")
    ldsspin('L_spinp', L_PCNT, 16, sp_p)
    stamp('bd')
    for w in range(16):
        a(f"  ds_read_b32 v{vV+w}, v{vPA} offset:{w*1024}")
    a(f"""  s_waitcnt lgkmcnt(8)
  ds_read_b32 v7, v{vPC}                     ; l_w[h] for w = l&15
  v_and_b32 v5, 1, v{vL}
  v_cmp_eq_u32 vcc, 1, v5
  s_waitcnt lgkmcnt(0)
  v_add_f32_dpp v7, v7, v7 row_ror:8 row_mask:0xf bank_mask:0xf
""")
    a(f"  v_add_f32 v{vV}, v{vV}, v{vV+1}")
    a(f"  v_add_f32 v{vV+2}, v{vV+2}, v{vV+3}")
    a("  v_add_f32_dpp v7, v7, v7 row_ror:4 row_mask:0xf bank_mask:0xf")
    a(f"  v_add_f32 v{vV+4}, v{vV+4}, v{vV+5}")
    a(f"  v_add_f32 v{vV+6}, v{vV+6}, v{vV+7}")
    a("  v_add_f32_dpp v7, v7, v7 row_ror:2 row_mask:0xf bank_mask:0xf")
    a(f"  v_add_f32 v{vV+8}, v{vV+8}, v{vV+9}")
    a(f"  v_add_f32 v{vV+10}, v{vV+10}, v{vV+11}")
    a("  v_add_f32_dpp v7, v7, v7 row_ror:1 row_mask:0xf bank_mask:0xf")
    a(f"  v_add_f32 v{vV+12}, v{vV+12}, v{vV+13}")
    a(f"  v_add_f32 v{vV+14}, v{vV+14}, v{vV+15}")
    o = treesum([vV+2*i for i in range(8)])
    a(f"""  v_mul_f32 v7, v7, v126
  v_mul_f32 v{o}, v{o}, v126
  v_cndmask_b32 v6, v127, v7, vcc
  v_bfi_b32 v{G}, s{sFF}, v{vTAG}, v{o}
  v_bfi_b32 v{G+1}, s{sFF}, v{vTAG}, v6
  s_sub_u32 s{sT3}, s3, 12
""")
    stamp('red1')
    a(f"""  s_cmp_eq_u32 s{sT3}, s{sS}
  s_cbranch_scc1 L_cons1
""")
    stamp('prepub')
    if xcc:
        a(f"""  s_cmp_eq_u32 s{sSAME}, 1
  s_cbranch_scc1 L_pubfast
  buffer_store_dwordx2 {vr(G,2)}, v{vPD}, {srd(rWS)}, s{sA0} offen {st_flags}
  s_branch L_pubdone
L_pubfast:
  buffer_store_dwordx2 {vr(G,2)}, v{vPD}, {srd(rWS)}, s{sA0} offen
L_pubdone:""")
    else:
        a(f"  buffer_store_dwordx2 {vr(G,2)}, v{vPD}, {srd(rWS)}, s{sA0} offen {st_flags if st1 is None else st1}")
    stamp('pub1')
    if stamps and 'pub1done' in stamps:
        a("  s_waitcnt vmcnt(0)")
        stamp('pub1done')
    if bar_e: a("  s_barrier")
    a("""  s_branch L_fin
L_cons1:
""")
    if n1 < 18: ldsinc(L_PUB)
    def l1loads(j):
        for i in range(3):
            a(f"  buffer_load_dwordx2 {vr(vW+6*j+2*i,2)}, v{vPD}, {srd(rWS)}, s{sA1+i} offen {ld_flags}")
    if delay1: a(f"  s_sleep {delay1}")
    pollpipe('L_poll1', ns1, l1loads, 3, lambda j: [vW+6*j+i for i in range(6)], G+8, [G+2+i for i in range(6)], stag1, sleep1)
    for src in range(4):
        a(f"  v_mov_b32_dpp v{G+8+src}, v{G+2*src+1} quad_perm:[0,0,2,2] row_mask:0xf bank_mask:0xf")
        a(f"  v_mov_b32_dpp v{G+12+src}, v{G+2*src+1} quad_perm:[1,1,3,3] row_mask:0xf bank_mask:0xf")
    a(f"""  v_max3_f32 v5, v{G+8}, v{G+9}, v{G+10}
  v_max_f32 v5, v5, v{G+11}
""")
    for src in range(4):
        a(f"  v_sub_f32 v{G+8+src}, v{G+8+src}, v5")
    for src in range(4):
        a(f"  v_exp_f32 v{G+8+src}, v{G+8+src}")
    a(f"""  s_nop 0
  v_mul_f32 v6, v{G+8}, v{G+12}
  v_mul_f32 v7, v{G+8}, v{G}
  v_fmac_f32 v6, v{G+9}, v{G+13}
  v_fmac_f32 v7, v{G+9}, v{G+2}
  v_fmac_f32 v6, v{G+10}, v{G+14}
  v_fmac_f32 v7, v{G+10}, v{G+4}
  v_fmac_f32 v6, v{G+11}, v{G+15}
  v_fmac_f32 v7, v{G+11}, v{G+6}
  v_rcp_f32 v6, v6
{OTADDR}
  v_mul_f32 v7, v7, v6
  v_cvt_pk_bf16_f32 v7, v7, v7
  ds_write_b16 v4, v7
""")
    if bar_e:
        a("  s_waitcnt lgkmcnt(0)")
        a("  s_barrier")
    else:
        a(f"""  v_mov_b32 v5, 1
  v_mov_b32 v4, {L_FLG2}
  s_waitcnt lgkmcnt(0)
  ds_write_b32 v4, v5
""")
    stamp('be')
    a("  s_branch L_fin")
    if trY:
        a("L_Y:")
        ldsspin('L_spinw', L_WCNT, 4, sp_w)
        def trreads(offs):
            n = 0
            for tau in range(4):
                for ks in range(2):
                    for half in range(2):
                        a(f"  ds_read_b64_tr_b16 {vr(vW+8*tau+4*ks+2*half,2)}, v{120+tau} offset:{offs(ks,half)}")
                        n += 1
                        if n == 12: a("  s_waitcnt lgkmcnt(4)")
        a("  s_cmp_eq_u32 s3, 8")
        a("  s_cbranch_scc1 L_trt")
        trreads(lambda ks, half: (32*ks + 4*half)*1024)
        a("  s_branch L_trd")
        a("L_trt:")
        trreads(lambda ks, half: ks*4096 + half*512)
        a("L_trd:")
        for i in range(16): a(f"  v_mov_b32 v{vV+i}, 0")
        stamp('bready')
        if bar_e:
            a("  s_waitcnt lgkmcnt(0)")
            a("  s_barrier")
        else:
            ldsspin('L_spiny', L_FLG2, 1, sp_y)
        stamp('be')
        a(f"""  ds_read_b128 {vr(vXD,4)}, v{vPC}
  ds_read_b128 {vr(vQF,4)}, v{vPC} offset:64
  s_waitcnt lgkmcnt(1)
""")
        for tau in range(4):
            a(f"  v_mfma_f32_16x16x32_bf16 {vr(vV+4*tau,4)}, {vr(vXD,4)}, {vr(vW+8*tau,4)}, {vr(vV+4*tau,4)}")
        a("  s_waitcnt lgkmcnt(0)")
        for tau in range(4):
            a(f"  v_mfma_f32_16x16x32_bf16 {vr(vV+4*tau,4)}, {vr(vQF,4)}, {vr(vW+8*tau+4,4)}, {vr(vV+4*tau,4)}")
        Y = vKF + 2
        a("  s_nop 7")
        for tau in range(4):
            a(f"  v_mov_b32_dpp v{Y}, v{vV+4*tau} quad_perm:[0,1,2,3] row_mask:{hex(1<<tau)} bank_mask:0xf")
        a(f"""  s_nop 0
  v_bfi_b32 v{Y}, s{sFF}, v{vTAG}, v{Y}
  buffer_store_dword v{Y}, v{vPB}, {srd(rWS)}, s{sA2} offen {st_flags}
""")
    else:
        a("L_Y:")
        if not nopre:
            ldsspin('L_spinw', L_WCNT, 4, sp_w)
            for g in range(ne, 8):
                a(f"  ds_read_b128 {vr(vW+4*g,4)}, v{vPA} offset:{g*9216}")
        a(f"""  v_mov_b32 v{vACC}, 0
      v_mov_b32 v{vACC+1}, 0
      v_mov_b32 v{vACC+2}, 0
      v_mov_b32 v{vACC+3}, 0""")
        stamp('bready')
        if bar_e:
            a("  s_waitcnt lgkmcnt(0)")
            a("  s_barrier")
        else:
            ldsspin('L_spiny', L_FLG2, 1, sp_y)
        stamp('be')
        a(f"  ds_read_b128 {vr(vXD,4)}, v{vPC}")
        if nopre:
            for g in range(8):
                a(f"  ds_read_b128 {vr(vW+4*g,4)}, v{vPA} offset:{g*9216}")
            a("  s_waitcnt lgkmcnt(8)")
        else:
            a("  s_waitcnt lgkmcnt(0)")
        stamp('woarr')
        diag_mfma(vXD, lambda g: vW+4*g, vACC, (lambda g: f"s_waitcnt lgkmcnt({7-g})") if nopre else (lambda g: None), (vQF, vQF+4))
        Y = vKF + 2
        a("  s_nop 7")
        for r in range(4):
            a(f"  v_permlane32_swap_b32 v{vACC+r}, v{vQF+8+r}")
        a("  s_nop 1")
        for r in range(4):
            a(f"  v_add_f32_dpp v{Y+r}, v{vQF+8+r}, v{vACC+r} row_ror:8 row_mask:0xf bank_mask:0xf")
        for r in range(4):
            a(f"  v_bfi_b32 v{Y+r}, s{sFF}, v{vTAG}, v{Y+r}")
        a(f"""  s_mov_b32 exec_lo, 0x00ff00ff
      s_mov_b32 exec_hi, 0
      buffer_store_dwordx4 {vr(Y,4)}, v{vPB}, {srd(rWS)}, s{sA2} offen {st_flags}
      s_mov_b64 exec, -1
    """)
    if bar_y: a("  s_barrier")
    elif ycnt: ldsinc(L_YCNT)
    a("L_fin:")
    if padto:
        a(f"""  s_cmp_lg_u32 s3, 9
  s_cbranch_scc1 L_end
L_pad:
  s_memrealtime s[90:91]
  s_waitcnt lgkmcnt(0)
  s_sub_u32 s90, s90, s88
  s_cmp_lt_u32 s90, {padto*100}
  s_cbranch_scc1 L_pad
""")
    if stamps:
        stamp('fin')
        a(f"""  s_waitcnt vmcnt(0)
  s_memrealtime s[{sST+14}:{sST+15}]
  s_lshl_b32 s{sT0}, s2, 4
  s_add_u32 s{sT0}, s{sT0}, s3
  s_lshl_b32 s{sT0}, s{sT0}, 6
  s_add_u32 s{sT2}, s{sWS}, s{sT0}
  s_addc_u32 s{sT3}, s{sWS+1}, 0
  s_add_u32 s{sT2}, s{sT2}, {W_STAMP}
  s_addc_u32 s{sT3}, s{sT3}, 0
  s_waitcnt lgkmcnt(0)
  s_mov_b64 exec, 1
  v_mov_b32 v4, 0
""")
        for i in range(4):
            for k in range(4):
                a(f"  v_mov_b32 v{8+k}, s{sST+4*i+k}")
            a(f"  global_store_dwordx4 v4, v[8:11], s[{sT2}:{sT2+1}] offset:{16*i}")
            a("  s_nop 1")
    a("L_end:")
    a("  s_endpgm")
    a(kernel_desc(NAME, 128, 102 if (stamps or padto) else 88, accum=128))
    open(fname, 'w').write(a.text())

ST_A = ['start','binit','qpart','gotq','bmax','pvdone','be']
ST_B = ['start','exdone','smdone','karr','bd','woarr','fin']
ST_C = ['start','pvdone','woissued','woarr0','bd','red1','be']
ST_D = ['start','exdone','gotq','smdone','bmax','pvdone','be']
ST_E = ['start','pvdone','woissued','woarr0','red1','be','fin']
ST_F = ['start','pvdone','bd','red1','prepub','pub1','pub1done']
ST_E = ['start','pvdone','woissued','woarr0','red1','be','fin']
BEST = dict(pulse=True, ns1=3, stag1=4, delay1=0, ns2=1, dual0=6, sleep0=2, delay0=16, delay2=4, vprio=0, earlypv=False, dmafirst=4, bar_e=True, bar_y=True, sp_q=2, sp_w=1, LB=0)
if __name__ == '__main__':
    gen('k23.s', **BEST)
```
